```python
import torch

def _softmax(x, axis=-1):
    return torch.softmax(x, dim=axis)
def _gelu(x):
    return torch.nn.functional.gelu(x, approximate="tanh")
def _silu(x):
    return torch.nn.functional.silu(x)
def _sigmoid(x):
    return torch.sigmoid(x)
def _layernorm(x, axis=-1, eps=1e-5):
    m = x.mean(dim=axis, keepdim=True)
    v = x.var(dim=axis, keepdim=True, unbiased=False)
    return (x - m) / torch.sqrt(v + eps)
def _scatter_add(tgt, idx, src, axis=0):
    return tgt.clone().index_add_(axis, idx, src)
def _segment_sum(src, seg, n):
    out = torch.zeros((n,) + src.shape[1:], dtype=src.dtype)
    return out.index_add_(0, seg, src)
def _pad(x, pw):
    flat = tuple(v for pair in reversed(pw) for v in pair)
    return torch.nn.functional.pad(x, flat)

kernel_name = 'standalone__gqa_block_cached__near_ridge'

def setup_inputs():

    _w = (lambda a: (lambda t: t.to(torch.bfloat16) if t.is_floating_point() else t)(torch.as_tensor(a)))
    B, Sq, D = 16, 32, 1024
    Hq, Hkv, Sk, Dh = 32, 4, 512, 128
    assert Hq % Hkv == 0, (Hq, Hkv)
    return {
        "x": _w((lambda *s: torch.randn(*s, dtype=torch.bfloat16) * 0.8)(B, Sq, D)),
        "k_cache": _w((lambda *s: torch.randn(*s, dtype=torch.bfloat16) * 0.8)(B, Hkv, Sk, Dh)),
        "v_cache": _w((lambda *s: torch.randn(*s, dtype=torch.bfloat16) * 0.05)(B, Hkv, Sk, Dh)),
        "wq": _w((lambda *s: torch.randn(*s, dtype=torch.bfloat16) * 0.8)(D, Hq * Dh) * (D ** -0.5)),
        "wo": _w((lambda *s: torch.randn(*s, dtype=torch.bfloat16) * 0.05)(Hq * Dh, D) * ((Hq * Dh) ** -0.5)),
    }

def reference(x, k_cache, v_cache, wq, wo):
    B, Sq, D = x.shape
    Hq, Dh = 32, 128
    Hkv = k_cache.shape[1]
    rep = Hq // Hkv
    q = (lambda x, *d: x.permute(*d))((x @ wq).reshape(B, Sq, Hq, Dh), 0, 2, 1, 3)
    k = (lambda x, n, axis: torch.repeat_interleave(x, n, dim=axis))(k_cache, rep, axis=1)
    v = (lambda x, n, axis: torch.repeat_interleave(x, n, dim=axis))(v_cache, rep, axis=1)
    scores = torch.einsum("bhqd,bhkd->bhqk", q, k) * (Dh ** -0.5)
    p = _softmax(scores, axis=-1)
    o = torch.einsum("bhqk,bhkd->bhqd", p, v)
    return (lambda x, *d: x.permute(*d))(o, 0, 2, 1, 3).reshape(B, Sq, Hq * Dh) @ wo
```

```python
import re

REG_RE = re.compile(r'^([vas])(\d+)$|^([vas])\[(\d+):(\d+)\]$')

def regs_of(op):
    op = op.strip()
    if op.startswith('-'): op = op[1:]
    if op.startswith('abs(') or op.startswith('|'):
        op = op.replace('abs(', '').replace(')', '').replace('|', '')
    if op == 'vcc': return [('s', 'vcc')]
    if op == 'exec': return [('s', 'exec')]
    if op == 'm0': return [('s', 'm0')]
    m = REG_RE.match(op)
    if not m: return []
    if m.group(1): return [(m.group(1), int(m.group(2)))]
    return [(m.group(3), r) for r in range(int(m.group(4)), int(m.group(5)) + 1)]

TRANS = ('v_exp_f32', 'v_log_f32', 'v_rcp_f32', 'v_rsq_f32', 'v_sqrt_f32', 'v_sin_f32', 'v_cos_f32')

class I:
    __slots__ = ('text', 'op', 'kind', 'reads', 'writes', 'srcc', 'ab', 'tag', 'size')
    def __init__(self, text, tag=None):
        self.text = text; self.tag = tag
        t = text.split(';')[0].strip()
        self.reads = []; self.writes = []; self.srcc = []; self.ab = []
        if t.endswith(':') or t.startswith('.') or not t:
            self.op = t; self.kind = 'label'; return
        parts = t.split(None, 1)
        self.op = op = parts[0]
        ops = []
        if len(parts) > 1:
            ops = [o.strip() for o in parts[1].split(',')]
            last = ops[-1].split()
            mods = last[1:] if last else []
            if last: ops[-1] = last[0]
        else:
            mods = []
        R = lambda o: regs_of(o)
        if op.startswith('v_mfma'):
            self.kind = 'mfma'
            self.writes = R(ops[0]); self.ab = R(ops[1]) + R(ops[2]); self.srcc = R(ops[3])
            self.reads = self.ab + self.srcc
        elif op.startswith('ds_read'):
            self.kind = 'dsr'; self.writes = R(ops[0]); self.reads = R(ops[1])
        elif op.startswith('ds_write'):
            self.kind = 'dsw'; self.reads = sum((R(o) for o in ops), [])
        elif op.startswith('buffer_load') or op.startswith('global_load'):
            allt = t.split()
            if 'lds' in allt:
                self.kind = 'dma'; self.reads = sum((R(o) for o in ops), []) + [('s', 'm0')]
            else:
                self.kind = 'vload'; self.writes = R(ops[0]); self.reads = sum((R(o) for o in ops[1:]), [])
        elif op.startswith('buffer_store') or op.startswith('global_store'):
            self.kind = 'vstore'; self.reads = sum((R(o) for o in ops), [])
        elif op.startswith('s_waitcnt'):
            self.kind = 'wait'
        elif op == 's_barrier': self.kind = 'barrier'
        elif op == 's_nop': self.kind = 'nop'
        elif op.startswith('s_cbranch') or op == 's_branch' or op == 's_endpgm':
            self.kind = 'branch'
        elif op.startswith('s_load') or op.startswith('s_mem'):
            self.kind = 'smem'; self.writes = R(ops[0]); self.reads = sum((R(o) for o in ops[1:]), [])
        elif op.startswith('s_cmp') or op.startswith('s_bitcmp'):
            self.kind = 'salu'; self.reads = sum((R(o) for o in ops), [])
        elif op.startswith('s_'):
            self.kind = 'salu'; self.writes = R(ops[0]); self.reads = sum((R(o) for o in ops[1:]), [])
        elif op.startswith('v_permlane'):
            self.kind = 'valu'; self.writes = R(ops[0]) + R(ops[1]); self.reads = list(self.writes)
        elif op.startswith('v_cmp'):
            self.kind = 'valu'; self.writes = R(ops[0]); self.reads = sum((R(o) for o in ops[1:]), [])
        elif op.startswith('v_'):
            self.kind = 'valu'; self.writes = R(ops[0]); self.reads = sum((R(o) for o in ops[1:]), [])
            if op.startswith('v_fmac') or op.startswith('v_mac'): self.reads += self.writes
            if op.startswith('v_cndmask') and len(ops) == 3: self.reads.append(('s', 'vcc'))
        else:
            raise ValueError("unknown instr: " + text)

class Prog:
    def __init__(self):
        self.ins = []
        self.lg = []
        self.vm = []
        self.auto = True
        self.stats = {}
    def raw(self, text, tag=None):
        i = I(text, tag); self.ins.append(i); return i
    def comment(self, text):
        self.ins.append(I("; " + text) if False else _Comment(text))
    def label(self, name):
        self.ins.append(I(name + ":"))
    def _wait_lg(self, n):
        if n < len(self.lg):
            assert n <= 15
            self.raw(f"s_waitcnt lgkmcnt({n})"); self.lg = self.lg[len(self.lg) - n:] if n else []
    def _wait_vm(self, n):
        if n < len(self.vm):
            assert n <= 63, n
            self.raw(f"s_waitcnt vmcnt({n})"); self.vm = self.vm[len(self.vm) - n:] if n else []
    def wait_lg(self, n=0): self._wait_lg(n)
    def wait_vm(self, n=0): self._wait_vm(n)
    def wait_tags(self, tags):
        last = -1
        for k, o in enumerate(self.vm):
            if o['tag'] in tags: last = k
        if last >= 0: self._wait_vm(len(self.vm) - 1 - last)
    def e(self, text, tag=None):
        i = I(text, tag)
        touched = set(i.reads) | set(i.writes)
        last = -1
        for k, regs in enumerate(self.lg):
            if regs & touched: last = k
        if last >= 0: self._wait_lg(len(self.lg) - 1 - last)
        last = -1
        for k, o in enumerate(self.vm):
            if o['regs'] & touched: last = k
        if last >= 0: self._wait_vm(len(self.vm) - 1 - last)
        if i.kind in ('dsr', 'dsw'):
            if len(self.lg) >= 15: self._wait_lg(14)
            self.lg.append(set(i.writes))
        if i.kind in ('dma', 'vload', 'vstore'):
            if len(self.vm) >= 63: self._wait_vm(62)
            self.vm.append(dict(regs=set(i.writes), tag=tag))
        self.ins.append(i)
        return i
    def many(self, lst):
        for x in lst:
            if isinstance(x, tuple): self.e(*x)
            else: self.e(x)
    def forget(self):
        self.vm = []
    def finalize(self):
        out = []
        hist = []
        def states_since(pred):
            n = 0
            for h in reversed(hist):
                if pred(h): return n
                n += (int(h.text.split()[1]) + 1) if h.kind == 'nop' else 1
                if n > 24: return None
            return None
        nnop = 0
        for i in self.ins:
            if isinstance(i, _Comment) or i.kind == 'label':
                out.append(i); continue
            need = 0
            rd = set(i.reads); wr = set(i.writes)
            vr = {r for r in rd if r[0] in 'va'}; vw = {r for r in wr if r[0] in 'va'}
            sr = {r for r in rd if r[0] == 's'}
            def req(pred, n):
                nonlocal need
                s = states_since(pred)
                if s is not None and s < n: need = max(need, n - s)
            isvalu = lambda h: h.kind == 'valu'
            if i.kind == 'mfma':
                req(lambda h: isvalu(h) and set(h.writes) & vr, 2)
                ab = set(i.ab); c = set(i.srcc)
                req(lambda h: h.kind == 'mfma' and set(h.writes) & ab, 12)
                req(lambda h: h.kind == 'mfma' and (set(h.writes) & c) and set(h.writes) != c, 10)
                req(lambda h: h.kind == 'mfma' and (set(h.writes) & vw) and set(h.writes) != c, 10)
                req(lambda h: isvalu(h) and ('s', 'exec') in h.writes, 4)
            if i.kind in ('valu', 'dsw', 'vstore', 'dsr', 'vload', 'dma'):
                req(lambda h: h.kind == 'mfma' and set(h.writes) & (vr | vw), 12)
            if i.kind == 'valu':
                req(lambda h: h.kind == 'mfma' and set(h.srcc) & vw, 7)
                req(lambda h: isvalu(h) and h.op.startswith(TRANS) and set(h.writes) & vr, 1) if not i.op.startswith(TRANS) else None
                req(lambda h: isvalu(h) and set(h.writes) & sr, 2)
                req(lambda h: h.kind == 'vstore' and ('x4' in h.op or 'x3' in h.op) and set(h.reads) & vw, 2)
                if i.op.startswith('v_permlane'):
                    req(lambda h: isvalu(h) and set(h.writes) & vr, 2)
                if i.op.startswith('v_readfirstlane') or i.op.startswith('v_readlane'):
                    req(lambda h: isvalu(h) and set(h.writes) & vr, 1)
                if 'dpp' in i.text or 'row_' in i.text:
                    req(lambda h: isvalu(h) and set(h.writes) & vr, 2)
            if i.kind in ('dsr', 'vload'):
                req(lambda h: h.kind == 'vstore' and ('x4' in h.op or 'x3' in h.op) and set(h.reads) & vw, 2)
            if i.kind in ('dma', 'vload', 'vstore'):
                req(lambda h: isvalu(h) and set(h.writes) & sr, 5)
            if i.kind == 'dma':
                req(lambda h: h.kind == 'salu' and ('s', 'm0') in h.writes, 1)
            if i.kind in ('salu', 'smem', 'branch'):
                req(lambda h: isvalu(h) and set(h.writes) & sr, 4)
                if i.kind == 'branch' and 'vcc' in i.op:
                    req(lambda h: isvalu(h) and ('s', 'vcc') in h.writes, 5)
            while need > 0:
                k = min(need, 16)
                n = I(f"s_nop {k-1}"); out.append(n); hist.append(n); need -= k; nnop += 1
            out.append(i); hist.append(i)
            if len(hist) > 64: hist = hist[-40:]
        self.stats['nops'] = nnop
        self.final = out
        return out
    def text(self):
        L = []
        for i in self.final:
            if isinstance(i, _Comment): L.append("; " + i.text)
            elif i.kind == 'label': L.append(i.text)
            else: L.append("    " + i.text)
        return "\n".join(L)
    def count(self):
        c = {}
        for i in self.final:
            if isinstance(i, _Comment) or i.kind == 'label': continue
            c[i.kind] = c.get(i.kind, 0) + 1
        return c

class _Comment:
    kind = 'comment'
    def __init__(self, t): self.text = t

class RegAlloc:
    def __init__(self, prefix, lo, hi):
        self.p = prefix; self.free = set(range(lo, hi)); self.hi = lo; self.names = {}
    def alloc(self, n=1, align=1, name=None):
        for s in sorted(self.free):
            if s % align: continue
            if all((s + k) in self.free for k in range(n)):
                for k in range(n): self.free.discard(s + k)
                self.hi = max(self.hi, s + n)
                if name: self.names[name] = (s, n)
                return s
        raise RuntimeError(f"out of {self.p} regs for {name} n={n}")
    def release(self, s, n=1):
        for k in range(n):
            assert (s + k) not in self.free
            self.free.add(s + k)
    def r(self, s, n=1):
        return f"{self.p}{s}" if n == 1 else f"{self.p}[{s}:{s+n-1}]"
```

```python
import sys, math
sys.path.insert(0, 'tools')
from asmlib import Prog, RegAlloc

NAME = "standalone__gqa_block_cached__near_ridge_kernel"

WS_E   = 0x0
WS_QF  = 0x10000
WS_OF  = 0x20000
WS_PF  = 0x30000
WS_DBG = 0x40000
WS_QD  = 0x100000
WS_OD  = 0x400000
WS_PD  = 0x800000
WS_SIZE = 0x1000000
DG = 16384
NDG = 10
QQ_DG = 9

DEFAULTS = dict(
    cap=4,
    pro=6,
    spin=200000,
    stagger=True,
    nt_w='', nt_kv='', nt_x='',
    prefetch_code=True,
    stamps=False,
    stop_after=None,
    n1=4,
)

class Gen:
    def __init__(self, **kw):
        self.o = dict(DEFAULTS); self.o.update(kw)
        self.p = Prog()
        self.V = RegAlloc('v', 0, 256)
        self.A = RegAlloc('a', 0, 256)
        self.nlabel = 0
        self.stamp_i = 0

    def e(self, t, tag=None): return self.p.e(t, tag)
    def v(self, r, n=1): return self.V.r(r, n)
    def a(self, r, n=1): return self.A.r(r, n)
    def lab(self, s):
        self.nlabel += 1; return f"L_{s}_{self.nlabel}"
    def stamp(self, name):
        if not self.o['stamps']: return
        k = self.stamp_i; self.stamp_i += 1
        self.stamp_names.append(name)
        p = self.p
        p.wait_lg(0)
        self.e("s_memrealtime s[84:85]")
        p.raw("s_waitcnt lgkmcnt(0)")
        self.e(f"v_mov_b32 {self.v(self.vStamp)}, s84")
        self.e("s_mov_b64 exec, 1")
        self.e(f"buffer_store_dword {self.v(self.vStamp)}, {self.v(self.vStampA)}, s[32:35], 0 offen offset:{k*4}")
        self.e("s_mov_b64 exec, -1")

    def init_alloc(self):
        self.free = list(range(NDG - 1))
        self.dg9_free = True
        self.chunks = {}
        self.stream = []
        self.si = 0
    def build_stream(self):
        S = []
        def g(chunk, gi, kind, **kw): S.append(dict(chunk=chunk, gi=gi, kind=kind, **kw))
        for m in range(8):
            g(f"XX{m}", 0, 'X', stage=2*m)
            g(f"W{2*m}", 0, 'W'); g(f"W{2*m}", 1, 'W')
            g(f"XX{m}", 1, 'X', stage=2*m+1)
            g(f"W{2*m+1}", 0, 'W'); g(f"W{2*m+1}", 1, 'W')
        for s in range(8):
            g(f"K{s}", 0, 'K'); g(f"K{s}", 1, 'K')
        for s in range(8):
            g(f"V{s}", 0, 'V'); g(f"V{s}", 1, 'V')
        order = [('WO', s) for s in range(7)] + [('OO', 0), ('OO', 1), ('WO', 7)]
        nxt = 8
        for m in range(2, 8):
            order.append(('OO', m))
            for _ in range(2):
                if nxt < 16: order.append(('WO', nxt)); nxt += 1
        while nxt < 16: order.append(('WO', nxt)); nxt += 1
        for kind, s in order:
            if kind == 'WO':
                g(f"WO{s}", 0, 'WO'); g(f"WO{s}", 1, 'WO')
            else:
                g(f"OO{s}", 0, 'O', gate='osync'); g(f"OO{s}", 1, 'O', gate='osync')
        self.stream = S
        self.gates = set(['osync'])
        self.hold = 0
    def alloc_dg(self, chunk):
        if chunk in self.chunks: return self.chunks[chunk]
        allow9 = self.dg9_free and self.dg9_ok(chunk)
        avail = len(self.free) + (1 if allow9 else 0)
        if len(self.free) - self.hold <= 0 and not allow9: return None
        if allow9:
            d = QQ_DG; self.dg9_free = False
        else:
            d = self.free.pop(0)
        self.chunks[chunk] = d
        return d
    def dg9_ok(self, chunk):
        if self.phase == 1:
            if chunk.startswith('W') and not chunk.startswith('WO'): return int(chunk[1:]) <= 12
            if chunk.startswith('XX'): return int(chunk[2:]) <= 5
            return False
        if self.phase == 3: return True
        return False
    def release(self, chunk):
        d = self.chunks[chunk]
        if d == QQ_DG: self.dg9_free = True
        else: self.free.append(d)
    def next_granules(self, n):
        out = []
        while n > 0 and self.si < len(self.stream):
            gd = self.stream[self.si]
            if gd.get('gate') in self.gates: break
            d = self.alloc_dg(gd['chunk'])
            if d is None: break
            out.append(self.granule_ops(gd, d))
            self.si += 1; n -= 1
        return out
    def granule_ops(self, gd, d):
        k = gd['kind']; lds = d * DG + gd['gi'] * 8192
        tag = (gd['chunk'], gd['gi'])
        ops = [f"s_add_u32 m0, s44, {lds}"]
        V = self.v
        if k == 'X':
            ops += ["s_add_u32 s45, s45, 128", "s_and_b32 s45, s45, 2047"]
            f = self.o['nt_x']
            ops += [(f"buffer_load_dwordx4 {V(self.vX)}, s[8:11], s45 offen {f} lds", tag),
                    (f"buffer_load_dwordx4 {V(self.vX+1)}, s[8:11], s45 offen offset:1024 {f} lds", tag)]
        elif k == 'W':
            ops += ["s_add_u32 s46, s46, 262144", "s_and_b32 s46, s46, 0x7fffff"]
            f = self.o['nt_w']
            ops += [(f"buffer_load_dwordx4 {V(self.vW)}, s[20:23], s46 offen {f} lds", tag),
                    (f"buffer_load_dwordx4 {V(self.vW+1)}, s[20:23], s46 offen offset:1024 {f} lds", tag)]
        elif k in 'KV':
            cur = 's47' if k == 'K' else 's48'
            srd = 's[12:15]' if k == 'K' else 's[16:19]'
            r0, r1 = (self.vK, self.vK+1) if k == 'K' else (self.vV, self.vV)
            f = self.o['nt_kv']
            if gd['gi'] == 0:
                ops += [f"s_add_u32 {cur}, {cur}, 8192", f"s_and_b32 {cur}, {cur}, 0xffff"]
                so = cur
            else:
                ops += [f"s_add_u32 s51, {cur}, 65536"]
                so = 's51'
            ops += [(f"buffer_load_dwordx4 {V(r0)}, {srd}, {so} offen {f} lds", tag),
                    (f"buffer_load_dwordx4 {V(r1)}, {srd}, {so} offen offset:1024 {f} lds", tag)]
        elif k == 'WO':
            ops += ["s_add_u32 s49, s49, 65536", "s_and_b32 s49, s49, 0x1fffff"]
            f = self.o['nt_w']
            ops += [(f"buffer_load_dwordx4 {V(self.vWO)}, s[24:27], s49 offen {f} lds", tag),
                    (f"buffer_load_dwordx4 {V(self.vWO+1)}, s[24:27], s49 offen offset:1024 {f} lds", tag)]
        elif k == 'O':
            ops += ["s_add_u32 s50, s50, 8192", "s_and_b32 s50, s50, 0x1ffff"]
            ops += [(f"buffer_load_dwordx4 {V(self.vO)}, s[80:83], s50 offen sc1 lds", tag),
                    (f"buffer_load_dwordx4 {V(self.vO+1)}, s[80:83], s50 offen offset:1024 sc1 lds", tag)]
        return ops
    def issue(self, n):
        for ops in self.next_granules(n): self.p.many(ops)
    def tags(self, *chunks):
        t = set()
        for c in chunks:
            if isinstance(c, tuple): t.add(c)
            else: t.add((c, 0)); t.add((c, 1))
        return t
    def ldsaddr(self, base_regs, chunk_or_abs, inner):
        a = (self.chunks[chunk_or_abs] * DG if isinstance(chunk_or_abs, str) else chunk_or_abs) + inner
        st = a // 65536
        return base_regs[st], a - st * 65536

    @staticmethod
    def spread(slots, fillers):
        flat = []
        for f in fillers: flat.append(f)
        n = len(slots)
        res = [[] for _ in range(n)]
        for k, f in enumerate(flat):
            res[min(n - 1, (k * n) // max(1, len(flat)))].append(f)
        return res

    def poll(self, vaddr):
        p = self.p
        L = self.lab("poll"); D = self.lab("pdone")
        self.e(f"s_mov_b32 s54, {self.o['spin']}")
        p.label(L)
        p.raw(f"buffer_load_dword {self.v(self.vPoll)}, {self.v(vaddr)}, s[32:35], 0 offen sc1")
        p.raw("s_waitcnt vmcnt(0)")
        p.forget()
        p.raw(f"v_cmp_ne_u32 vcc, s52, {self.v(self.vPoll)}")
        p.raw(f"s_cbranch_vccz {D}")
        p.raw("s_sub_u32 s54, s54, 1")
        p.raw(f"s_cbranch_scc0 {L}")
        p.label(D)
    def flag_store(self, vaddr):
        self.e("s_mov_b64 exec, 1")
        self.e(f"buffer_store_dword {self.v(self.vTag)}, {self.v(vaddr)}, s[32:35], 0 offen sc1")
        self.e("s_mov_b64 exec, -1")

    def build(self):
        o = self.o; p = self.p; V = self.V; A = self.A; v = self.v; a = self.a; e = self.e
        self.stamp_names = []
        self.init_alloc(); self.build_stream(); self.phase = 1
        V.alloc(1, name='v0')
        p.raw("s_cmp_ge_u32 s2, 256")
        p.raw("s_cbranch_scc1 L_exit")
        p.raw("s_load_dwordx16 s[64:79], s[0:1], 0")
        T = [V.alloc(1) for _ in range(8)]
        t0, t1, t2, t3, t4, t5, t6, t7 = T
        vL = V.alloc(1, name='lane')
        e(f"v_and_b32 {v(vL)}, 63, v0")
        e(f"v_lshrrev_b32 {v(t0)}, 6, v0")
        e(f"v_readfirstlane_b32 s39, {v(t0)}")
        e("s_and_b32 s36, s2, 3")
        e("s_lshr_b32 s37, s2, 3")
        e("s_and_b32 s37, s37, 7")
        e("s_lshr_b32 s51, s2, 6")
        e("s_bfe_u32 s53, s2, 0x10002")
        e("s_lshl_b32 s38, s53, 2")
        e("s_add_u32 s38, s38, s51")
        e("s_lshr_b32 s40, s37, 1")
        e("s_and_b32 s41, s37, 1")
        e("s_lshr_b32 s42, s39, 1")
        e("s_and_b32 s43, s39, 1")
        e("s_lshl_b32 s44, s39, 11")
        if o['stagger']:
            e("s_lshl_b32 s55, s51, 2"); e("s_lshl_b32 s56, s37, 1"); e("s_add_u32 s55, s55, s56"); e("s_and_b32 s55, s55, 15")
            e("s_lshl_b32 s57, s40, 1")
        else:
            e("s_mov_b32 s55, 0"); e("s_mov_b32 s57, 0")
        e("s_lshl_b32 s45, s55, 7"); e("s_sub_u32 s45, s45, 128"); e("s_and_b32 s45, s45, 2047")
        e("s_lshl_b32 s46, s55, 19"); e("s_sub_u32 s46, s46, 262144"); e("s_and_b32 s46, s46, 0x7fffff")
        e("s_lshl_b32 s47, s57, 13"); e("s_sub_u32 s47, s47, 8192"); e("s_and_b32 s47, s47, 0xffff")
        e("s_mov_b32 s48, s47")
        e("s_lshl_b32 s49, s55, 17"); e("s_sub_u32 s49, s49, 65536"); e("s_and_b32 s49, s49, 0x1fffff")
        e("s_lshl_b32 s50, s55, 13"); e("s_sub_u32 s50, s50, 8192"); e("s_and_b32 s50, s50, 0x1ffff")

        self.vX = V.alloc(2); self.vW = V.alloc(2); self.vWO = V.alloc(2); self.vK = V.alloc(2); self.vV = V.alloc(1)
        self.vO = V.alloc(2); vLin = V.alloc(1); vL16 = V.alloc(1)
        e(f"v_lshlrev_b32 {v(vL16)}, 4, {v(vL)}")
        e(f"v_add_u32 {v(vLin)}, s44, {v(vL16)}")
        e(f"v_lshrrev_b32 {v(t0)}, 4, {v(vL)}")
        e(f"v_bfe_u32 {v(t1)}, {v(vL)}, 2, 2")
        e(f"v_xor_b32 {v(t1)}, {v(t1)}, {v(t0)}")
        e(f"v_lshlrev_b32 {v(t1)}, 6, {v(t1)}")
        e(f"v_and_b32 {v(t2)}, 3, {v(vL)}")
        e(f"v_lshl_add_u32 {v(t1)}, {v(t2)}, 4, {v(t1)}")
        e("s_lshl_b32 s56, s39, 3")
        e(f"v_add_u32 {v(t2)}, s56, {v(t0)}")
        e(f"v_lshl_add_u32 {v(self.vW)}, {v(t2)}, 13, {v(t1)}")
        e(f"v_add_u32 {v(self.vW+1)}, {4*8192-1024}, {v(self.vW)}")
        e(f"v_lshl_add_u32 {v(self.vWO)}, {v(t2)}, 11, {v(t1)}")
        e(f"v_add_u32 {v(self.vWO+1)}, {4*2048-1024}, {v(self.vWO)}")
        e(f"v_lshl_add_u32 {v(self.vV)}, {v(t2)}, 8, {v(t1)}")
        e(f"v_and_b32 {v(t3)}, 15, {v(vL)}")
        e("s_lshl_b32 s56, s43, 3")
        e(f"v_add_u32 {v(t4)}, s56, {v(t0)}")
        e(f"v_xor_b32 {v(t4)}, {v(t4)}, {v(t3)}")
        e(f"v_lshlrev_b32 {v(t5)}, 8, {v(t2)}")
        e(f"v_lshl_add_u32 {v(self.vK)}, {v(t4)}, 4, {v(t5)}")
        e(f"v_xor_b32 {v(self.vK+1)}, 64, {v(self.vK)}")
        e(f"v_lshrrev_b32 {v(t0)}, 3, {v(vL)}")
        e(f"v_and_b32 {v(t1)}, 7, {v(vL)}")
        e(f"v_lshrrev_b32 {v(t2)}, 1, {v(t0)}")
        e(f"v_xor_b32 {v(t1)}, {v(t1)}, {v(t2)}")
        e("s_lshl_b32 s56, s39, 4")
        e(f"v_add_u32 {v(t3)}, s56, {v(t0)}")
        e("s_lshl_b32 s56, s41, 5")
        e(f"v_xor_b32 {v(t3)}, s56, {v(t3)}")
        e(f"v_lshlrev_b32 {v(t3)}, 11, {v(t3)}")
        e(f"v_lshl_add_u32 {v(self.vX)}, {v(t1)}, 4, {v(t3)}")
        e(f"v_xor_b32 {v(self.vX+1)}, 64, {v(self.vX)}")
        e(f"v_add_u32 {v(self.vX+1)}, {8*2048-1024}, {v(self.vX+1)}")
        p.raw("s_waitcnt lgkmcnt(0)")
        def srd(d, ptr, off_expr_ops, size):
            for x in off_expr_ops: e(x)
            e(f"s_add_u32 s{d}, s{ptr}, s56"); e(f"s_addc_u32 s{d+1}, s{ptr+1}, 0")
            e(f"s_mov_b32 s{d+3}, 0x00020000")
            if isinstance(size, int): e(f"s_mov_b32 s{d+2}, {size}")
            else: e(size.replace('D2', f"s{d+2}"))
        srd(8, 64, ["s_lshl_b32 s56, s38, 17"], 131072)
        srd(20, 70, ["s_lshl_b32 s58, s36, 3", "s_add_u32 s58, s58, s37", "s_lshl_b32 s56, s58, 8"], "s_sub_u32 D2, 0x800000, s56")
        self.issue(o['pro'])
        srd(12, 66, ["s_lshl_b32 s59, s38, 1", "s_add_u32 s59, s59, s41", "s_lshl_b32 s59, s59, 2", "s_add_u32 s59, s59, s36", "s_lshl_b32 s56, s59, 17"], 131072)
        srd(16, 68, [], 131072)
        srd(24, 72, ["s_lshl_b32 s56, s36, 21", "s_lshl_b32 s58, s37, 8", "s_add_u32 s56, s56, s58"], "s_sub_u32 D2, 0x800000, s56")
        srd(28, 74, ["s_mov_b32 s56, 0"], 0x100000)
        srd(32, 78, [], WS_SIZE)
        srd(80, 78, ["s_and_b32 s60, s2, 7", "s_lshr_b32 s58, s2, 6", "s_lshl_b32 s58, s58, 3", "s_add_u32 s60, s60, s58",
                     "s_lshl_b32 s56, s60, 17", f"s_add_u32 s56, s56, {WS_OD - 1024}"], 131072 + 1024)
        vE = V.alloc(1)
        e(f"s_lshl_b32 s56, s38, 8")
        e(f"v_mov_b32 {v(t0)}, s56")
        e(f"buffer_load_dword {v(vE)}, {v(t0)}, s[32:35], 0 offen sc1")
        if o['prefetch_code']:
            p.raw("s_getpc_b64 s[62:63]")
            p.label("L_pc")
            e(f"s_lshr_b32 s56, s2, 3"); e("s_and_b32 s56, s56, 3"); e("s_lshl_b32 s56, s56, 13")
            e(f"v_lshlrev_b32 {v(t1)}, 7, {v(vL)}")
            e(f"v_add_u32 {v(t1)}, s56, {v(t1)}")
            e(f"v_min_u32 {v(t1)}, L_exit-L_pc, {v(t1)}")
            e(f"v_and_b32 {v(t1)}, 0xfffffffc, {v(t1)}")
            e(f"global_load_dword {v(t2)}, {v(t1)}, s[62:63]")
        e("s_lshr_b32 s56, s36, 1"); e("s_lshl_b32 s56, s56, 10")
        e(f"v_add_u32 {v(t3)}, 1024, {v(vLin)}")
        e(f"v_add_u32 {v(self.vO)}, s56, {v(t3)}")
        e(f"v_subrev_u32 {v(self.vO+1)}, s56, {v(t3)}")
        def three(name, expr_reg):
            r = V.alloc(3)
            e(f"v_mov_b32 {v(r)}, {v(expr_reg)}")
            e(f"v_add_u32 {v(r+1)}, 0x10000, {v(expr_reg)}")
            e(f"v_add_u32 {v(r+2)}, 0x20000, {v(expr_reg)}")
            return [r, r+1, r+2]
        vTr_r = V.alloc(1); vTr_cp = V.alloc(1); vTr_nh = V.alloc(1); vTr_kh = V.alloc(1)
        e(f"v_bfe_u32 {v(vTr_r)}, {v(vL)}, 2, 2")
        e(f"v_and_b32 {v(t4)}, 1, {v(vL)}"); e(f"v_lshlrev_b32 {v(t4)}, 4, {v(t4)}")
        e(f"v_bfe_u32 {v(t5)}, {v(vL)}, 1, 1"); e(f"v_lshl_add_u32 {v(vTr_cp)}, {v(t5)}, 3, {v(t4)}")
        e(f"v_bfe_u32 {v(vTr_nh)}, {v(vL)}, 4, 1")
        e(f"v_lshrrev_b32 {v(vTr_kh)}, 5, {v(vL)}")
        def wbase(dst, xor_nh_sgpr=None):
            e(f"v_xor_b32 {v(t4)}, s39, {v(vTr_r)}")
            e(f"v_lshlrev_b32 {v(t4)}, 6, {v(t4)}")
            e(f"v_lshl_add_u32 {v(t4)}, {v(vTr_r)}, 8, {v(t4)}")
            e(f"v_lshl_add_u32 {v(t4)}, {v(vTr_kh)}, 11, {v(t4)}")
            if xor_nh_sgpr:
                e(f"v_xor_b32 {v(t5)}, {xor_nh_sgpr}, {v(vTr_nh)}")
                e(f"v_lshl_add_u32 {v(t4)}, {v(t5)}, 5, {v(t4)}")
            else:
                e(f"v_lshl_add_u32 {v(t4)}, {v(vTr_nh)}, 5, {v(t4)}")
            e(f"v_add_u32 {v(dst)}, {v(t4)}, {v(vTr_cp)}")
        wbase(t6); aW = three('aW', t6)
        e(f"v_and_b32 {v(t4)}, 31, {v(vL)}")
        e(f"v_bfe_u32 {v(t5)}, {v(vL)}, 1, 3")
        e(f"v_xor_b32 {v(t5)}, {v(t5)}, {v(vTr_kh)}")
        e(f"v_lshlrev_b32 {v(t5)}, 4, {v(t5)}")
        e(f"v_lshl_add_u32 {v(t6)}, {v(t4)}, 7, {v(t5)}")
        aX = []
        for t in range(4):
            e(f"v_xor_b32 {v(t7)}, {32*t}, {v(t6)}")
            aX.append(three('aX', t7))
        if o['stamps']:
            self.vStamp = V.alloc(1); self.vStampA = V.alloc(1)
            e(f"s_lshl_b32 s56, s2, 2"); e("s_add_u32 s56, s56, s39"); e("s_lshl_b32 s56, s56, 7"); e(f"s_add_u32 s56, s56, {WS_DBG}")
            e(f"v_mov_b32 {v(self.vStampA)}, s56")
        self.stamp('start')

        acc = V.alloc(32, align=4)
        fA = [A.alloc(4, align=4) for _ in range(2)]
        fB = [[A.alloc(4, align=4) for _ in range(2)] for _ in range(2)]
        def gemm_reads(buf, wchunk, bchunk_fn, t, aWset):
            ops = []
            for rd in range(2):
                r, imm = self.ldsaddr(aWset, wchunk, (t >> 1) * 8192 + (4 * (t & 1) + rd) * 1024)
                ops.append(f"ds_read_b64_tr_b16 {a(fA[buf] + 2*rd, 2)}, {v(r)} offset:{imm}")
            for bt in range(2):
                r, imm = bchunk_fn(t, bt)
                ops.append(f"ds_read_b128 {a(fB[buf][bt], 4)}, {v(r)} offset:{imm}")
            return ops
        def gemm_phase(nm, wname, bname, bread, aWset, pre_barrier_hook=None):
            p.wait_tags(self.tags(wname(0), bname(0))); p.wait_lg(0); e("s_barrier")
            self.stamp(nm + '_first')
            p.many(gemm_reads(0, wname(0), bread(0), 0, aWset))
            for s in range(16):
                for t in range(4):
                    buf = t & 1
                    first = (s == 0 and t == 0)
                    fill = []
                    if t == 3:
                        p.wait_lg(0)
                        if s < 15: p.wait_tags(self.tags(wname(s+1), bname(s+1)))
                        e("s_barrier")
                        self.release(wname(s))
                        if s & 1: self.release(bname(s)[0])
                        if pre_barrier_hook: pre_barrier_hook(s)
                        if s < 15: p.many(gemm_reads(buf ^ 1, wname(s+1), bread(s+1), 0, aWset))
                        self.step_budget = o['cap']
                    else:
                        p.many(gemm_reads(buf ^ 1, wname(s), bread(s), t + 1, aWset))
                    ng = 1 if self.step_budget > 0 else 0
                    gr = self.next_granules(ng); self.step_budget -= len(gr)
                    for bt in range(2):
                        c = "0" if first else v(acc + 16*bt, 16)
                        e(f"v_mfma_f32_32x32x16_bf16 {v(acc + 16*bt, 16)}, {a(fA[buf], 4)}, {a(fB[buf][bt], 4)}, {c}")
                        if bt == 0 and gr: p.many(gr[0])
        self.step_budget = o['cap']
        def xread(s):
            def f(t, bt):
                return self.ldsaddr(aX[t], f"XX{s>>1}", (s & 1) * 8192 + bt * 4096)
            return f
        gemm_phase('p1', lambda s: f"W{s}", lambda s: (f"XX{s>>1}", s & 1), xread, aW)
        self.stamp('p1_end')
        for r in aW: V.release(r)
        for s_ in aX:
            for r in s_: V.release(r)
        V.release(self.vX, 2); V.release(self.vW, 2)
        self.phase = 2

        e(f"v_readfirstlane_b32 s52, {v(vE)}")
        e("s_mul_i32 s52, s52, 0x9E3779B1"); e("s_add_u32 s52, s52, 0x7F4A7C15")
        self.vTag = V.alloc(1); self.vPoll = V.alloc(1)
        e(f"v_mov_b32 {v(self.vTag)}, s52")
        V.release(vE)
        q = V.alloc(16, align=4)
        for k in range(16):
            e(f"v_cvt_pk_bf16_f32 {v(q+k)}, {v(acc+2*k)}, {v(acc+2*k+1)}")
        vLin2 = V.alloc(1)
        e(f"v_add_u32 {v(vLin2)}, 0x20000, {v(vLin)}")
        QQ = QQ_DG * DG
        assert self.dg9_free; self.dg9_free = False
        e(f"s_lshl_b32 s56, s2, 13"); e(f"s_add_u32 s56, s56, {WS_QD}")
        for i2 in range(2):
            e(f"buffer_store_dwordx4 {v(q+8+4*i2, 4)}, {v(vLin)}, s[32:35], s56 offen offset:{i2*1024} sc1", 'qst')
        for i2 in range(2):
            e(f"ds_write_b128 {v(vLin2)}, {v(q+4*i2, 4)} offset:{QQ - 0x20000 + i2*1024}")
        self.issue(o['n1'])
        vF = V.alloc(1); vPa = V.alloc(1)
        e(f"s_lshl_b32 s56, s2, 7"); e("s_lshl_b32 s58, s39, 2"); e("s_add_u32 s56, s56, s58"); e(f"s_add_u32 s56, s56, {WS_QF}")
        e(f"v_mov_b32 {v(vF)}, s56")
        e(f"s_xor_b32 s56, s2, 8"); e("s_lshl_b32 s56, s56, 7"); e(f"s_add_u32 s56, s56, {WS_QF}")
        e(f"v_and_b32 {v(t0)}, 3, {v(vL)}"); e(f"v_lshl_add_u32 {v(vPa)}, {v(t0)}, 2, s56")
        p.wait_tags({'qst'})
        self.flag_store(vF)
        aK = []
        e(f"v_and_b32 {v(t4)}, 31, {v(vL)}")
        e(f"v_and_b32 {v(t5)}, 15, {v(vL)}")
        e(f"v_xor_b32 {v(t5)}, {v(t5)}, {v(vTr_kh)}")
        e(f"v_lshlrev_b32 {v(t5)}, 4, {v(t5)}")
        e(f"v_lshl_add_u32 {v(t6)}, {v(t4)}, 8, {v(t5)}")
        e("s_lshl_b32 s56, s43, 13")
        e(f"v_add_u32 {v(t6)}, s56, {v(t6)}")
        for t in range(8):
            e(f"v_xor_b32 {v(t7)}, {32*t}, {v(t6)}")
            aK.append(three('aK', t7))
        aV = []
        for ai in range(4):
            e("s_lshl_b32 s56, s43, 1"); e(f"s_xor_b32 s56, s56, {ai}")
            e(f"v_xor_b32 {v(t4)}, s56, {v(vTr_r)}")
            e(f"v_lshlrev_b32 {v(t4)}, 6, {v(t4)}")
            e(f"v_lshl_add_u32 {v(t4)}, {v(vTr_r)}, 8, {v(t4)}")
            e(f"v_lshl_add_u32 {v(t4)}, {v(vTr_kh)}, 10, {v(t4)}")
            e(f"v_lshl_add_u32 {v(t4)}, {v(vTr_nh)}, 5, {v(t4)}")
            e(f"v_add_u32 {v(t4)}, {v(t4)}, {v(vTr_cp)}")
            e("s_lshl_b32 s56, s43, 13")
            e(f"v_add_u32 {v(t4)}, s56, {v(t4)}")
            aV.append(three('aV', t4))
        aQ = V.alloc(1)
        e("s_lshl_b32 s56, s42, 13"); e(f"s_add_u32 s56, s56, 0x20000")
        e(f"v_add_u32 {v(aQ)}, s56, {v(vL16)}")
        self.issue(99)
        self.stamp('q_flag')
        self.poll(vPa)
        self.stamp('q_polled')
        e(f"s_add_u32 m0, s44, {QQ + 8192}")
        e(f"s_xor_b32 s56, s2, 8"); e("s_lshl_b32 s56, s56, 13"); e(f"s_add_u32 s56, s56, {WS_QD}")
        for i2 in range(2):
            e(f"buffer_load_dwordx4 {v(vLin)}, s[32:35], s56 offen offset:{i2*1024} sc1 lds", 'qp')
        p.wait_tags({'qp'} | self.tags('K0')); p.wait_lg(0); e("s_barrier")
        V.release(q, 16); V.release(acc, 32); V.release(vLin2)
        for r in fA: A.release(r, 4)
        for x in fB:
            for r in x: A.release(r, 4)
        fQ = A.alloc(32, align=4)
        for T_ in range(8):
            e(f"ds_read_b128 {a(fQ+4*T_, 4)}, {v(aQ)} offset:{QQ - 0x20000 + T_*1024}")
        self.stamp('q_ready')

        S = V.alloc(128, align=4)
        fK = A.alloc(32, align=4)
        vM = V.alloc(1)
        DK = 4
        def kread(n):
            s, t = n >> 3, n & 7
            r, imm = self.ldsaddr(aK[t], f"K{s}", 0)
            return f"ds_read_b128 {a(fK + 4*(n & 7), 4)}, {v(r)} offset:{imm}"
        for n in range(DK): e(kread(n))
        def maxops(s, first):
            ops = []
            for k in range(8):
                x, y = S + 16*s + 2*k, S + 16*s + 2*k + 1
                if first and k == 0: ops.append(f"v_max_f32 {v(vM)}, {v(x)}, {v(y)}")
                else: ops.append(f"v_max3_f32 {v(vM)}, {v(vM)}, {v(x)}, {v(y)}")
            return ops
        fV = A.alloc(32, align=4)
        DV = 4
        def vread(n):
            s, f = n >> 3, n & 7
            u, ai = f >> 2, f & 3
            ops = []
            for rd in range(2):
                r, imm = self.ldsaddr(aV[ai], f"V{s}", (4*u + 2*rd) * 1024)
                ops.append(f"ds_read_b64_tr_b16 {a(fV + 4*f + 2*rd, 2)}, {v(r)} offset:{imm}")
            return ops
        for s in range(8):
            mx = maxops(s-1, s == 1) if s > 0 else []
            gr = self.next_granules(2)
            for t in range(8):
                n = 8*s + t
                if t == 8 - DK:
                    if s < 7: p.wait_tags(self.tags(f"K{s+1}"))
                    else: p.wait_tags(self.tags("V0"))
                    e("s_barrier")
                    if s > 0: self.release(f"K{s-1}")
                    gr += self.next_granules(o['cap'] - 2)
                c = "0" if t == 0 else v(S + 16*s, 16)
                e(f"v_mfma_f32_32x32x16_bf16 {v(S + 16*s, 16)}, {a(fK + 4*t, 4)}, {a(fQ + 4*t, 4)}, {c}")
                if n + DK < 64: e(kread(n + DK))
                elif s == 7:
                    p.many(vread(n + DK - 64))
                if t >= 2 and mx:
                    e(mx.pop(0))
                    if t >= 6 and mx: e(mx.pop(0))
                if gr and t in (1, 3, 5, 7): p.many(gr.pop(0))
            assert not mx and not gr, (mx, gr)
        self.stamp('qk_end')
        p.many(maxops(7, False))
        vM2 = V.alloc(1); vNM = V.alloc(1)
        e(f"v_mov_b32 {v(vM2)}, {v(vM)}")
        e(f"v_permlane32_swap_b32 {v(vM)}, {v(vM2)}")
        e(f"v_max_f32 {v(vM)}, {v(vM)}, {v(vM2)}")
        C = 128 ** -0.5 * math.log2(math.e)
        import struct
        cbits = struct.unpack('<I', struct.pack('<f', C))[0]
        e(f"s_mov_b32 s61, {cbits:#x}")
        e(f"v_mul_f32 {v(vM)}, s61, {v(vM)}")
        e(f"v_sub_f32 {v(vNM)}, 0, {v(vM)}")
        def smops(s):
            b = S + 16*s
            ops = []
            for u in range(2):
                for k in range(8): ops.append(f"v_fma_f32 {v(b+8*u+k)}, {v(b+8*u+k)}, s61, {v(vNM)}")
                for k in range(8): ops.append(f"v_exp_f32 {v(b+8*u+k)}, {v(b+8*u+k)}")
                for k in range(4): ops.append(f"v_cvt_pk_bf16_f32 {v(b+4*u+k)}, {v(b+8*u+2*k)}, {v(b+8*u+2*k+1)}")
            return ops
        p.many(smops(0))
        oOwn = V.alloc(32, align=4)
        oSnd = A.alloc(32, align=4)
        lAcc = A.alloc(16, align=4)
        ones = A.alloc(4, align=4)
        e(f"v_mov_b32 {v(t0)}, 0x3f803f80")
        for k in range(4): e(f"v_accvgpr_write_b32 {a(ones+k)}, {v(t0)}")
        def oacc(ai): return v(oOwn + 16*ai, 16) if ai < 2 else a(oSnd + 16*(ai-2), 16)
        self.rs = None
        for s in range(8):
            sm = smops(s+1) if s < 7 else []
            if s == 5: self.hold = 2
            gr = self.next_granules(2)
            nslot = 10; slot = 0
            for f in range(8):
                n = 8*s + f
                u, ai = f >> 2, f & 3
                if f == 8 - DV:
                    if s < 7: p.wait_tags(self.tags(f"V{s+1}"))
                    e("s_barrier")
                    if s > 0: self.release(f"V{s-1}")
                    else: self.release("K7")
                    gr += self.next_granules(o['cap'] - 2)
                P_ = v(S + 16*s + 4*u, 4)
                c = "0" if (s == 0 and u == 0) else oacc(ai)
                e(f"v_mfma_f32_32x32x16_bf16 {oacc(ai)}, {a(fV + 4*f, 4)}, {P_}, {c}")
                if n + DV < 64: p.many(vread(n + DV))
                k = (len(sm) + (nslot - slot) - 1) // (nslot - slot)
                for _ in range(min(k, len(sm))): e(sm.pop(0))
                slot += 1
                if ai == 3:
                    c = "0" if (s == 0 and u == 0) else a(lAcc, 16)
                    e(f"v_mfma_f32_32x32x16_bf16 {a(lAcc, 16)}, {a(ones, 4)}, {P_}, {c}")
                    k = (len(sm) + (nslot - slot) - 1) // (nslot - slot)
                    for _ in range(min(k, len(sm))): e(sm.pop(0))
                    slot += 1
                if gr and f in (1, 3, 5, 7): p.many(gr.pop(0))
            assert not sm and not gr
        self.stamp('pv_end')
        self.hold = 0
        assert len(self.free) >= 2, self.free
        rs = [self.free.pop(0), self.free.pop(0)]
        aRw = V.alloc(1); aRr = V.alloc(1); aSw = V.alloc(1); aSr = V.alloc(1)
        e("s_cmp_eq_u32 s42, 0")
        e(f"s_cselect_b32 s56, {rs[0]*DG}, {rs[1]*DG}")
        e("s_lshl_b32 s58, s43, 13"); e("s_add_u32 s59, s56, s58")
        e(f"v_add_u32 {v(aRw)}, s59, {v(vL16)}")
        e("s_xor_b32 s58, s58, 8192"); e("s_add_u32 s59, s56, s58")
        e(f"v_add_u32 {v(aRr)}, s59, {v(vL16)}")
        e(f"v_lshlrev_b32 {v(t0)}, 2, {v(vL)}")
        e("s_lshl_b32 s58, s39, 9"); e(f"s_add_u32 s59, s58, {QQ}")
        e(f"v_add_u32 {v(aSw)}, s59, {v(t0)}")
        e("s_xor_b32 s58, s58, 512"); e(f"s_add_u32 s59, s58, {QQ}")
        e(f"v_add_u32 {v(aSr)}, s59, {v(t0)}")
        e(f"ds_write_b32 {v(aSw)}, {v(vM)}")
        for k in range(8):
            e(f"ds_write_b128 {v(aRw)}, {a(oSnd + 4*k, 4)} offset:{k*1024}")
        e(f"ds_write_b32 {v(aSw)}, {a(lAcc)} offset:256")
        vLo = V.alloc(1)
        e(f"v_accvgpr_read_b32 {v(vLo)}, {a(lAcc)}")
        p.wait_lg(0); e("s_barrier")
        self.release("V7")
        vMp = V.alloc(1); vLp = V.alloc(1)
        e(f"ds_read_b32 {v(vMp)}, {v(aSr)}")
        e(f"ds_read_b32 {v(vLp)}, {v(aSr)} offset:256")
        oP = S
        for k in range(8):
            e(f"ds_read_b128 {v(oP + 4*k, 4)}, {v(aRr)} offset:{k*1024}")
        self.issue(2)
        vMx = V.alloc(1); vF0 = V.alloc(1); vF1 = V.alloc(1)
        e(f"v_max_f32 {v(vMx)}, {v(vM)}, {v(vMp)}")
        e(f"v_sub_f32 {v(vF0)}, {v(vM)}, {v(vMx)}")
        e(f"v_sub_f32 {v(vF1)}, {v(vMp)}, {v(vMx)}")
        e(f"v_exp_f32 {v(vF0)}, {v(vF0)}")
        e(f"v_exp_f32 {v(vF1)}, {v(vF1)}")
        e(f"v_mul_f32 {v(vLo)}, {v(vLo)}, {v(vF0)}")
        e(f"v_fma_f32 {v(vLo)}, {v(vLp)}, {v(vF1)}, {v(vLo)}")
        e(f"v_rcp_f32 {v(vLo)}, {v(vLo)}")
        e(f"v_mul_f32 {v(vF0)}, {v(vF0)}, {v(vLo)}")
        e(f"v_mul_f32 {v(vF1)}, {v(vF1)}, {v(vLo)}")
        for k in range(32): e(f"v_mul_f32 {v(oOwn+k)}, {v(oOwn+k)}, {v(vF0)}")
        for k in range(32): e(f"v_fma_f32 {v(oOwn+k)}, {v(oP+k)}, {v(vF1)}, {v(oOwn+k)}")
        ob = S + 32
        for k in range(16): e(f"v_cvt_pk_bf16_f32 {v(ob+k)}, {v(oOwn+2*k)}, {v(oOwn+2*k+1)}")
        e("s_xor_b32 s56, s37, s42"); e("s_lshl_b32 s56, s56, 1"); e("s_add_u32 s56, s56, s43")
        e("s_lshl_b32 s56, s56, 13"); e("s_lshl_b32 s58, s41, 10"); e("s_add_u32 s56, s56, s58")
        e("s_add_u32 s56, s56, 1024")
        e("s_add_u32 s58, s56, 4096")
        for T_ in range(4):
            so = 's56' if T_ < 2 else 's58'
            e(f"buffer_store_dwordx4 {v(ob+4*T_, 4)}, {v(vL16)}, s[80:83], {so} offen offset:{(T_&1)*2048} sc1", 'ost')
        p.wait_lg(0); e("s_barrier")
        self.free += rs; self.dg9_free = True; self.phase = 3
        e(f"s_lshl_b32 s56, s60, 7"); e(f"s_add_u32 s56, s56, {WS_OF}")
        e(f"v_and_b32 {v(t0)}, 31, {v(vL)}"); e(f"v_lshl_add_u32 {v(vPa)}, {v(t0)}, 2, s56")
        e("s_lshl_b32 s58, s37, 4"); e("s_add_u32 s56, s56, s58"); e("s_lshl_b32 s58, s39, 2"); e("s_add_u32 s56, s56, s58")
        e(f"v_mov_b32 {v(vF)}, s56")
        self.hold = 2
        self.issue(o['n1'])
        p.wait_tags({'ost'})
        self.flag_store(vF)
        self.issue(99)
        for s_ in aK + aV:
            for r in s_: V.release(r)
        V.release(S, 128); V.release(oOwn, 32); A.release(oSnd, 32); A.release(lAcc, 16); A.release(ones, 4)
        A.release(fQ, 32); A.release(fK, 32); A.release(fV, 32)
        e("s_and_b32 s56, s36, 1")
        wbase(t6, 's56'); aWO = three('aWO', t6)
        aL = three('aL', vL16)
        self.stamp('o_flag')
        self.poll(vPa)
        self.stamp('o_polled')
        self.hold = 0
        self.gates.discard('osync')
        self.issue(4)

        acc = V.alloc(32, align=4)
        fA[:] = [A.alloc(4, align=4) for _ in range(2)]
        fB[:] = [[A.alloc(4, align=4) for _ in range(2)] for _ in range(2)]
        self.step_budget = o['cap']
        def oread(s):
            def f(t, bt):
                return self.ldsaddr(aL, f"OO{s>>1}", (s & 1) * 8192 + (2*t + bt) * 1024)
            return f
        gemm_phase('p3', lambda s: f"WO{s}", lambda s: (f"OO{s>>1}", s & 1), oread, aWO)
        self.stamp('p3_end')
        for ps in range(1, 4):
            e(f"s_xor_b32 s56, s2, {ps}"); e("s_lshl_b32 s56, s56, 15"); e(f"s_add_u32 s56, s56, {WS_PD + (ps-1)*8192}")
            for hf in range(2):
                e(f"buffer_store_dwordx4 {v(acc + 8*ps + 4*hf, 4)}, {v(vLin)}, s[32:35], s56 offen offset:{hf*1024} sc1", 'pst')
        e(f"v_and_b32 {v(t0)}, 3, {v(vL)}")
        e(f"v_max_u32 {v(t0)}, 1, {v(t0)}")
        e(f"v_xor_b32 {v(t1)}, s2, {v(t0)}")
        e(f"v_lshlrev_b32 {v(t1)}, 7, {v(t1)}")
        e(f"v_lshl_add_u32 {v(t1)}, {v(t0)}, 4, {v(t1)}")
        e("s_lshl_b32 s58, s39, 2"); e(f"s_add_u32 s58, s58, {WS_PF}")
        e(f"v_add_u32 {v(vF)}, s58, {v(t1)}")
        e(f"s_lshl_b32 s56, s2, 7"); e("s_add_u32 s56, s56, s58")
        e(f"v_lshl_add_u32 {v(vPa)}, {v(t0)}, 4, s56")
        vOut = V.alloc(1)
        e("s_lshr_b32 s56, s36, 1"); e("s_lshl_b32 s56, s56, 5"); e("s_lshl_b32 s58, s38, 6"); e("s_add_u32 s56, s56, s58")
        e(f"v_and_b32 {v(t2)}, 31, {v(vL)}"); e(f"v_add_u32 {v(t2)}, s56, {v(t2)}"); e(f"v_lshlrev_b32 {v(t2)}, 11, {v(t2)}")
        e("s_lshl_b32 s56, s37, 7"); e("s_lshl_b32 s58, s39, 5"); e("s_add_u32 s56, s56, s58")
        e("s_and_b32 s58, s36, 1"); e("s_lshl_b32 s58, s58, 4"); e("s_add_u32 s56, s56, s58"); e("s_lshl_b32 s56, s56, 1")
        e(f"v_lshl_add_u32 {v(t2)}, {v(vTr_kh)}, 4, {v(t2)}")
        e(f"v_add_u32 {v(vOut)}, s56, {v(t2)}")
        p.wait_tags({'pst'})
        e("s_mov_b64 exec, 14")
        e(f"buffer_store_dword {v(self.vTag)}, {v(vF)}, s[32:35], 0 offen sc1")
        e("s_mov_b64 exec, -1")
        self.stamp('p_flag')
        self.poll(vPa)
        self.stamp('p_polled')
        pr = V.alloc(24, align=4)
        for ps in range(1, 4):
            e(f"s_lshl_b32 s56, s2, 15"); e(f"s_add_u32 s56, s56, {WS_PD + (ps-1)*8192}")
            for hf in range(2):
                e(f"buffer_load_dwordx4 {v(pr + 8*(ps-1) + 4*hf, 4)}, {v(vLin)}, s[32:35], s56 offen offset:{hf*1024} sc1")
        for ps in range(3):
            for k in range(8): e(f"v_add_f32 {v(acc+k)}, {v(acc+k)}, {v(pr + 8*ps + k)}")
        for k in range(4): e(f"v_cvt_pk_bf16_f32 {v(pr+k)}, {v(acc+2*k)}, {v(acc+2*k+1)}")
        e(f"buffer_store_dwordx4 {v(pr, 4)}, {v(vOut)}, s[28:31], 0 offen")
        e("s_and_b32 s56, s2, 0x3b")
        e("s_or_b32 s56, s56, s39")
        p.raw("s_cmp_lg_u32 s56, 0")
        p.raw("s_cbranch_scc1 L_fin")
        e(f"s_lshl_b32 s56, s38, 8")
        e(f"v_mov_b32 {v(t0)}, s56")
        self.flag_store(t0)
        p.label("L_fin")
        self.stamp('end')
        p.raw("s_waitcnt vmcnt(0)")
        p.label("L_exit")
        p.raw("s_endpgm")
        assert self.si == len(self.stream), (self.si, len(self.stream))
        p.finalize()
        return self.text()

    def text(self):
        nv = 256; na = self.A.hi
        na = max(na, 4)
        total = nv + ((na + 7) // 8) * 8
        hdr = f"""; GQA block (Q projection, cached attention, output projection) as one persistent launch.
; @launch grid=(256,1,1) block=(256,1,1) lds=163840
.amdgcn_target "amdgcn-amd-amdhsa--gfx950"
.text
.globl {NAME}
.p2align 8
.type {NAME},@function
{NAME}:
"""
        ftr = f"""
.section .rodata,"a"
.p2align 6
.amdhsa_kernel {NAME}
  .amdhsa_next_free_vgpr 512
  .amdhsa_next_free_sgpr 96
  .amdhsa_accum_offset 256
  .amdhsa_group_segment_fixed_size 0
  .amdhsa_kernarg_size 64
  .amdhsa_user_sgpr_count 2
  .amdhsa_user_sgpr_kernarg_segment_ptr 1
  .amdhsa_system_sgpr_workgroup_id_x 1
.end_amdhsa_kernel
"""
        return hdr + self.p.text() + ftr

if __name__ == "__main__":
    import json
    out = sys.argv[1] if len(sys.argv) > 1 else "standalone__gqa_block_cached__near_ridge.s"
    kw = json.loads(sys.argv[2]) if len(sys.argv) > 2 else {}
    g = Gen(**kw)
    txt = g.build()
    open(out, "w").write(txt)
    if g.o['stamps']: json.dump(g.stamp_names, open(out[:-2] + ".stamps.json", "w"))
    print("written", out, "instr counts", g.p.count(), "nops", g.p.stats, "V hi", g.V.hi, "A hi", g.A.hi, "stamps", g.stamp_names)
```

```python
import sys, math
sys.path.insert(0, 'tools')
from asmlib import Prog, RegAlloc

NAME = "standalone__gqa_block_cached__near_ridge_kernel"

WS_E   = 0x0
WS_QF  = 0x10000
WS_OF  = 0x20000
WS_PF  = 0x30000
WS_DBG = 0x40000
WS_QD  = 0x100000
WS_OD  = 0x400000
WS_PD  = 0x800000
WS_SIZE = 0x1000000
DG = 16384
NDG = 10
QQ_DG = 9

DEFAULTS = dict(
    cap=4,
    pro=6,
    spin=200000,
    stagger=True,
    nt_w='', nt_kv='', nt_x='',
    prefetch_code=True,
    stamps=False,
    stop_after=None,
    n1=4,
    probe=None,
)

class Gen:
    def __init__(self, **kw):
        self.o = dict(DEFAULTS); self.o.update(kw)
        self.p = Prog()
        self.V = RegAlloc('v', 0, 256)
        self.A = RegAlloc('a', 0, 256)
        self.nlabel = 0
        self.stamp_i = 0

    def e(self, t, tag=None): return self.p.e(t, tag)
    def v(self, r, n=1): return self.V.r(r, n)
    def a(self, r, n=1): return self.A.r(r, n)
    def lab(self, s):
        self.nlabel += 1; return f"L_{s}_{self.nlabel}"
    def stamp(self, name):
        pr = self.o['probe']
        if pr and name in pr[:2]:
            r = 86 if name == pr[0] else 88
            self.p.wait_lg(0)
            self.e(f"s_memrealtime s[{r}:{r+1}]")
            self.p.raw("s_waitcnt lgkmcnt(0)")
        if not self.o['stamps']: return
        k = self.stamp_i; self.stamp_i += 1
        self.stamp_names.append(name)
        p = self.p
        p.wait_lg(0)
        self.e("s_memrealtime s[84:85]")
        p.raw("s_waitcnt lgkmcnt(0)")
        self.e(f"v_mov_b32 {self.v(self.vStamp)}, s84")
        self.e("s_mov_b64 exec, 1")
        self.e(f"buffer_store_dword {self.v(self.vStamp)}, {self.v(self.vStampA)}, s[32:35], 0 offen offset:{k*4}")
        self.e("s_mov_b64 exec, -1")

    def init_alloc(self):
        self.free = list(range(NDG - 1))
        self.dg9_free = True
        self.chunks = {}
        self.stream = []
        self.si = 0
    def build_stream(self):
        S = []
        def g(chunk, gi, kind, **kw): S.append(dict(chunk=chunk, gi=gi, kind=kind, **kw))
        for m in range(8):
            g(f"XX{m}", 0, 'X', stage=2*m)
            g(f"W{2*m}", 0, 'W'); g(f"W{2*m}", 1, 'W')
            g(f"XX{m}", 1, 'X', stage=2*m+1)
            g(f"W{2*m+1}", 0, 'W'); g(f"W{2*m+1}", 1, 'W')
        for s in range(8):
            g(f"K{s}", 0, 'K'); g(f"K{s}", 1, 'K')
        for s in range(8):
            g(f"V{s}", 0, 'V'); g(f"V{s}", 1, 'V')
        order = [('WO', s) for s in range(7)] + [('OO', 0), ('OO', 1), ('WO', 7)]
        nxt = 8
        for m in range(2, 8):
            order.append(('OO', m))
            for _ in range(2):
                if nxt < 16: order.append(('WO', nxt)); nxt += 1
        while nxt < 16: order.append(('WO', nxt)); nxt += 1
        for kind, s in order:
            if kind == 'WO':
                g(f"WO{s}", 0, 'WO'); g(f"WO{s}", 1, 'WO')
            else:
                g(f"OO{s}", 0, 'O', gate='osync'); g(f"OO{s}", 1, 'O', gate='osync')
        self.stream = S
        self.gates = set(['osync'])
        self.hold = 0
    def alloc_dg(self, chunk):
        if chunk in self.chunks: return self.chunks[chunk]
        allow9 = self.dg9_free and self.dg9_ok(chunk)
        avail = len(self.free) + (1 if allow9 else 0)
        if len(self.free) - self.hold <= 0 and not allow9: return None
        if allow9:
            d = QQ_DG; self.dg9_free = False
        else:
            d = self.free.pop(0)
        self.chunks[chunk] = d
        return d
    def dg9_ok(self, chunk):
        if self.phase == 1:
            if chunk.startswith('W') and not chunk.startswith('WO'): return int(chunk[1:]) <= 12
            if chunk.startswith('XX'): return int(chunk[2:]) <= 5
            return False
        if self.phase == 3: return True
        return False
    def release(self, chunk):
        d = self.chunks[chunk]
        if d == QQ_DG: self.dg9_free = True
        else: self.free.append(d)
    def next_granules(self, n):
        out = []
        while n > 0 and self.si < len(self.stream):
            gd = self.stream[self.si]
            if gd.get('gate') in self.gates: break
            d = self.alloc_dg(gd['chunk'])
            if d is None: break
            out.append(self.granule_ops(gd, d))
            self.si += 1; n -= 1
        return out
    def granule_ops(self, gd, d):
        k = gd['kind']; lds = d * DG + gd['gi'] * 8192
        tag = (gd['chunk'], gd['gi'])
        ops = [f"s_add_u32 m0, s44, {lds}"]
        V = self.v
        if k == 'X':
            ops += ["s_add_u32 s45, s45, 128", "s_and_b32 s45, s45, 2047"]
            f = self.o['nt_x']
            ops += [(f"buffer_load_dwordx4 {V(self.vX)}, s[8:11], s45 offen {f} lds", tag),
                    (f"buffer_load_dwordx4 {V(self.vX+1)}, s[8:11], s45 offen offset:1024 {f} lds", tag)]
        elif k == 'W':
            ops += ["s_add_u32 s46, s46, 262144", "s_and_b32 s46, s46, 0x7fffff"]
            f = self.o['nt_w']
            ops += [(f"buffer_load_dwordx4 {V(self.vW)}, s[20:23], s46 offen {f} lds", tag),
                    (f"buffer_load_dwordx4 {V(self.vW+1)}, s[20:23], s46 offen offset:1024 {f} lds", tag)]
        elif k in 'KV':
            cur = 's47' if k == 'K' else 's48'
            srd = 's[12:15]' if k == 'K' else 's[16:19]'
            r0, r1 = (self.vK, self.vK+1) if k == 'K' else (self.vV, self.vV)
            f = self.o['nt_kv']
            if gd['gi'] == 0:
                ops += [f"s_add_u32 {cur}, {cur}, 8192", f"s_and_b32 {cur}, {cur}, 0xffff"]
                so = cur
            else:
                ops += [f"s_add_u32 s51, {cur}, 65536"]
                so = 's51'
            ops += [(f"buffer_load_dwordx4 {V(r0)}, {srd}, {so} offen {f} lds", tag),
                    (f"buffer_load_dwordx4 {V(r1)}, {srd}, {so} offen offset:1024 {f} lds", tag)]
        elif k == 'WO':
            ops += ["s_add_u32 s49, s49, 65536", "s_and_b32 s49, s49, 0x1fffff"]
            f = self.o['nt_w']
            ops += [(f"buffer_load_dwordx4 {V(self.vWO)}, s[24:27], s49 offen {f} lds", tag),
                    (f"buffer_load_dwordx4 {V(self.vWO+1)}, s[24:27], s49 offen offset:1024 {f} lds", tag)]
        elif k == 'O':
            ops += ["s_add_u32 s50, s50, 8192", "s_and_b32 s50, s50, 0x1ffff"]
            ops += [(f"buffer_load_dwordx4 {V(self.vO)}, s[80:83], s50 offen sc1 lds", tag),
                    (f"buffer_load_dwordx4 {V(self.vO+1)}, s[80:83], s50 offen offset:1024 sc1 lds", tag)]
        return ops
    def issue(self, n):
        for ops in self.next_granules(n): self.p.many(ops)
    def tags(self, *chunks):
        t = set()
        for c in chunks:
            if isinstance(c, tuple): t.add(c)
            else: t.add((c, 0)); t.add((c, 1))
        return t
    def ldsaddr(self, base_regs, chunk_or_abs, inner):
        a = (self.chunks[chunk_or_abs] * DG if isinstance(chunk_or_abs, str) else chunk_or_abs) + inner
        st = a // 65536
        return base_regs[st], a - st * 65536

    @staticmethod
    def spread(slots, fillers):
        flat = []
        for f in fillers: flat.append(f)
        n = len(slots)
        res = [[] for _ in range(n)]
        for k, f in enumerate(flat):
            res[min(n - 1, (k * n) // max(1, len(flat)))].append(f)
        return res

    def poll(self, vaddr):
        p = self.p
        L = self.lab("poll"); D = self.lab("pdone")
        self.e(f"s_mov_b32 s54, {self.o['spin']}")
        p.label(L)
        p.raw(f"buffer_load_dword {self.v(self.vPoll)}, {self.v(vaddr)}, s[32:35], 0 offen sc1")
        p.raw("s_waitcnt vmcnt(0)")
        p.forget()
        p.raw(f"v_cmp_ne_u32 vcc, s52, {self.v(self.vPoll)}")
        p.raw(f"s_cbranch_vccz {D}")
        p.raw("s_sub_u32 s54, s54, 1")
        p.raw(f"s_cbranch_scc0 {L}")
        p.label(D)
    def flag_store(self, vaddr):
        self.e("s_mov_b64 exec, 1")
        self.e(f"buffer_store_dword {self.v(self.vTag)}, {self.v(vaddr)}, s[32:35], 0 offen sc1")
        self.e("s_mov_b64 exec, -1")

    def build(self):
        o = self.o; p = self.p; V = self.V; A = self.A; v = self.v; a = self.a; e = self.e
        self.stamp_names = []
        self.init_alloc(); self.build_stream(); self.phase = 1
        V.alloc(1, name='v0')
        p.raw("s_cmp_ge_u32 s2, 256")
        p.raw("s_cbranch_scc1 L_exit")
        if o['probe'] and 'entry' in o['probe'][:2]:
            p.raw("s_memrealtime s[86:87]"); p.raw("s_waitcnt lgkmcnt(0)")
        p.raw("s_load_dwordx16 s[64:79], s[0:1], 0")
        T = [V.alloc(1) for _ in range(8)]
        t0, t1, t2, t3, t4, t5, t6, t7 = T
        vL = V.alloc(1, name='lane')
        e(f"v_and_b32 {v(vL)}, 63, v0")
        e(f"v_lshrrev_b32 {v(t0)}, 6, v0")
        e(f"v_readfirstlane_b32 s39, {v(t0)}")
        e("s_and_b32 s36, s2, 3")
        e("s_lshr_b32 s37, s2, 3")
        e("s_and_b32 s37, s37, 7")
        e("s_lshr_b32 s51, s2, 6")
        e("s_bfe_u32 s53, s2, 0x10002")
        e("s_lshl_b32 s38, s53, 2")
        e("s_add_u32 s38, s38, s51")
        e("s_lshr_b32 s40, s37, 1")
        e("s_and_b32 s41, s37, 1")
        e("s_lshr_b32 s42, s39, 1")
        e("s_and_b32 s43, s39, 1")
        e("s_lshl_b32 s44, s39, 11")
        if o['stagger']:
            e("s_lshl_b32 s55, s51, 2"); e("s_lshl_b32 s56, s37, 1"); e("s_add_u32 s55, s55, s56"); e("s_and_b32 s55, s55, 15")
            e("s_lshl_b32 s57, s40, 1")
        else:
            e("s_mov_b32 s55, 0"); e("s_mov_b32 s57, 0")
        e("s_lshl_b32 s45, s55, 7"); e("s_sub_u32 s45, s45, 128"); e("s_and_b32 s45, s45, 2047")
        e("s_lshl_b32 s46, s55, 19"); e("s_sub_u32 s46, s46, 262144"); e("s_and_b32 s46, s46, 0x7fffff")
        e("s_lshl_b32 s47, s57, 13"); e("s_sub_u32 s47, s47, 8192"); e("s_and_b32 s47, s47, 0xffff")
        e("s_mov_b32 s48, s47")
        e("s_lshl_b32 s49, s55, 17"); e("s_sub_u32 s49, s49, 65536"); e("s_and_b32 s49, s49, 0x1fffff")
        e("s_lshl_b32 s50, s55, 13"); e("s_sub_u32 s50, s50, 8192"); e("s_and_b32 s50, s50, 0x1ffff")

        self.vX = V.alloc(2); self.vW = V.alloc(2); self.vWO = V.alloc(2); self.vK = V.alloc(2); self.vV = V.alloc(1)
        self.vO = V.alloc(2); vLin = V.alloc(1); vL16 = V.alloc(1)
        e(f"v_lshlrev_b32 {v(vL16)}, 4, {v(vL)}")
        e(f"v_add_u32 {v(vLin)}, s44, {v(vL16)}")
        e(f"v_lshrrev_b32 {v(t0)}, 4, {v(vL)}")
        e(f"v_bfe_u32 {v(t1)}, {v(vL)}, 2, 2")
        e(f"v_xor_b32 {v(t1)}, {v(t1)}, {v(t0)}")
        e(f"v_lshlrev_b32 {v(t1)}, 6, {v(t1)}")
        e(f"v_and_b32 {v(t2)}, 3, {v(vL)}")
        e(f"v_lshl_add_u32 {v(t1)}, {v(t2)}, 4, {v(t1)}")
        e("s_lshl_b32 s56, s39, 3")
        e(f"v_add_u32 {v(t2)}, s56, {v(t0)}")
        e(f"v_lshl_add_u32 {v(self.vW)}, {v(t2)}, 13, {v(t1)}")
        e(f"v_add_u32 {v(self.vW+1)}, {4*8192-1024}, {v(self.vW)}")
        e(f"v_lshl_add_u32 {v(self.vWO)}, {v(t2)}, 11, {v(t1)}")
        e(f"v_add_u32 {v(self.vWO+1)}, {4*2048-1024}, {v(self.vWO)}")
        e(f"v_lshl_add_u32 {v(self.vV)}, {v(t2)}, 8, {v(t1)}")
        e(f"v_and_b32 {v(t3)}, 15, {v(vL)}")
        e("s_lshl_b32 s56, s43, 3")
        e(f"v_add_u32 {v(t4)}, s56, {v(t0)}")
        e(f"v_xor_b32 {v(t4)}, {v(t4)}, {v(t3)}")
        e(f"v_lshlrev_b32 {v(t5)}, 8, {v(t2)}")
        e(f"v_lshl_add_u32 {v(self.vK)}, {v(t4)}, 4, {v(t5)}")
        e(f"v_xor_b32 {v(self.vK+1)}, 64, {v(self.vK)}")
        e(f"v_lshrrev_b32 {v(t0)}, 3, {v(vL)}")
        e(f"v_and_b32 {v(t1)}, 7, {v(vL)}")
        e(f"v_lshrrev_b32 {v(t2)}, 1, {v(t0)}")
        e(f"v_xor_b32 {v(t1)}, {v(t1)}, {v(t2)}")
        e("s_lshl_b32 s56, s39, 4")
        e(f"v_add_u32 {v(t3)}, s56, {v(t0)}")
        e("s_lshl_b32 s56, s41, 5")
        e(f"v_xor_b32 {v(t3)}, s56, {v(t3)}")
        e(f"v_lshlrev_b32 {v(t3)}, 11, {v(t3)}")
        e(f"v_lshl_add_u32 {v(self.vX)}, {v(t1)}, 4, {v(t3)}")
        e(f"v_xor_b32 {v(self.vX+1)}, 64, {v(self.vX)}")
        e(f"v_add_u32 {v(self.vX+1)}, {8*2048-1024}, {v(self.vX+1)}")
        p.raw("s_waitcnt lgkmcnt(0)")
        def srd(d, ptr, off_expr_ops, size):
            for x in off_expr_ops: e(x)
            e(f"s_add_u32 s{d}, s{ptr}, s56"); e(f"s_addc_u32 s{d+1}, s{ptr+1}, 0")
            e(f"s_mov_b32 s{d+3}, 0x00020000")
            if isinstance(size, int): e(f"s_mov_b32 s{d+2}, {size}")
            else: e(size.replace('D2', f"s{d+2}"))
        srd(8, 64, ["s_lshl_b32 s56, s38, 17"], 131072)
        srd(20, 70, ["s_lshl_b32 s58, s36, 3", "s_add_u32 s58, s58, s37", "s_lshl_b32 s56, s58, 8"], "s_sub_u32 D2, 0x800000, s56")
        self.issue(o['pro'])
        srd(12, 66, ["s_lshl_b32 s59, s38, 1", "s_add_u32 s59, s59, s41", "s_lshl_b32 s59, s59, 2", "s_add_u32 s59, s59, s36", "s_lshl_b32 s56, s59, 17"], 131072)
        srd(16, 68, [], 131072)
        srd(24, 72, ["s_lshl_b32 s56, s36, 21", "s_lshl_b32 s58, s37, 8", "s_add_u32 s56, s56, s58"], "s_sub_u32 D2, 0x800000, s56")
        srd(28, 74, ["s_mov_b32 s56, 0"], 0x100000)
        srd(32, 78, [], WS_SIZE)
        srd(80, 78, ["s_and_b32 s60, s2, 7", "s_lshr_b32 s58, s2, 6", "s_lshl_b32 s58, s58, 3", "s_add_u32 s60, s60, s58",
                     "s_lshl_b32 s56, s60, 17", f"s_add_u32 s56, s56, {WS_OD - 1024}"], 131072 + 1024)
        vE = V.alloc(1)
        e(f"s_lshl_b32 s56, s38, 8")
        e(f"v_mov_b32 {v(t0)}, s56")
        e(f"buffer_load_dword {v(vE)}, {v(t0)}, s[32:35], 0 offen sc1")
        if o['prefetch_code']:
            p.raw("s_getpc_b64 s[62:63]")
            p.label("L_pc")
            e(f"s_lshr_b32 s56, s2, 3"); e("s_and_b32 s56, s56, 3"); e("s_lshl_b32 s56, s56, 13")
            e(f"v_lshlrev_b32 {v(t1)}, 7, {v(vL)}")
            e(f"v_add_u32 {v(t1)}, s56, {v(t1)}")
            e(f"v_min_u32 {v(t1)}, L_exit-L_pc, {v(t1)}")
            e(f"v_and_b32 {v(t1)}, 0xfffffffc, {v(t1)}")
            e(f"global_load_dword {v(t2)}, {v(t1)}, s[62:63]")
        e("s_lshr_b32 s56, s36, 1"); e("s_lshl_b32 s56, s56, 10")
        e(f"v_add_u32 {v(t3)}, 1024, {v(vLin)}")
        e(f"v_add_u32 {v(self.vO)}, s56, {v(t3)}")
        e(f"v_subrev_u32 {v(self.vO+1)}, s56, {v(t3)}")
        def three(name, expr_reg):
            r = V.alloc(3)
            e(f"v_mov_b32 {v(r)}, {v(expr_reg)}")
            e(f"v_add_u32 {v(r+1)}, 0x10000, {v(expr_reg)}")
            e(f"v_add_u32 {v(r+2)}, 0x20000, {v(expr_reg)}")
            return [r, r+1, r+2]
        vTr_r = V.alloc(1); vTr_cp = V.alloc(1); vTr_nh = V.alloc(1); vTr_kh = V.alloc(1)
        e(f"v_bfe_u32 {v(vTr_r)}, {v(vL)}, 2, 2")
        e(f"v_and_b32 {v(t4)}, 1, {v(vL)}"); e(f"v_lshlrev_b32 {v(t4)}, 4, {v(t4)}")
        e(f"v_bfe_u32 {v(t5)}, {v(vL)}, 1, 1"); e(f"v_lshl_add_u32 {v(vTr_cp)}, {v(t5)}, 3, {v(t4)}")
        e(f"v_bfe_u32 {v(vTr_nh)}, {v(vL)}, 4, 1")
        e(f"v_lshrrev_b32 {v(vTr_kh)}, 5, {v(vL)}")
        def wbase(dst, xor_nh_sgpr=None):
            e(f"v_xor_b32 {v(t4)}, s39, {v(vTr_r)}")
            e(f"v_lshlrev_b32 {v(t4)}, 6, {v(t4)}")
            e(f"v_lshl_add_u32 {v(t4)}, {v(vTr_r)}, 8, {v(t4)}")
            e(f"v_lshl_add_u32 {v(t4)}, {v(vTr_kh)}, 11, {v(t4)}")
            if xor_nh_sgpr:
                e(f"v_xor_b32 {v(t5)}, {xor_nh_sgpr}, {v(vTr_nh)}")
                e(f"v_lshl_add_u32 {v(t4)}, {v(t5)}, 5, {v(t4)}")
            else:
                e(f"v_lshl_add_u32 {v(t4)}, {v(vTr_nh)}, 5, {v(t4)}")
            e(f"v_add_u32 {v(dst)}, {v(t4)}, {v(vTr_cp)}")
        wbase(t6); aW = three('aW', t6)
        e(f"v_and_b32 {v(t4)}, 31, {v(vL)}")
        e(f"v_bfe_u32 {v(t5)}, {v(vL)}, 1, 3")
        e(f"v_xor_b32 {v(t5)}, {v(t5)}, {v(vTr_kh)}")
        e(f"v_lshlrev_b32 {v(t5)}, 4, {v(t5)}")
        e(f"v_lshl_add_u32 {v(t6)}, {v(t4)}, 7, {v(t5)}")
        aX = []
        for t in range(4):
            e(f"v_xor_b32 {v(t7)}, {32*t}, {v(t6)}")
            aX.append(three('aX', t7))
        if o['stamps']:
            self.vStamp = V.alloc(1); self.vStampA = V.alloc(1)
            e(f"s_lshl_b32 s56, s2, 2"); e("s_add_u32 s56, s56, s39"); e("s_lshl_b32 s56, s56, 7"); e(f"s_add_u32 s56, s56, {WS_DBG}")
            e(f"v_mov_b32 {v(self.vStampA)}, s56")
        self.stamp('start')

        acc = V.alloc(32, align=4)
        fA = [A.alloc(4, align=4) for _ in range(2)]
        fB = [[A.alloc(4, align=4) for _ in range(2)] for _ in range(2)]
        def gemm_reads(buf, wchunk, bchunk_fn, t, aWset):
            ops = []
            for rd in range(2):
                r, imm = self.ldsaddr(aWset, wchunk, (t >> 1) * 8192 + (4 * (t & 1) + rd) * 1024)
                ops.append(f"ds_read_b64_tr_b16 {a(fA[buf] + 2*rd, 2)}, {v(r)} offset:{imm}")
            for bt in range(2):
                r, imm = bchunk_fn(t, bt)
                ops.append(f"ds_read_b128 {a(fB[buf][bt], 4)}, {v(r)} offset:{imm}")
            return ops
        def gemm_phase(nm, wname, bname, bread, aWset, pre_barrier_hook=None):
            p.wait_tags(self.tags(wname(0), bname(0))); p.wait_lg(0); e("s_barrier")
            self.stamp(nm + '_first')
            p.many(gemm_reads(0, wname(0), bread(0), 0, aWset))
            for s in range(16):
                for t in range(4):
                    buf = t & 1
                    first = (s == 0 and t == 0)
                    fill = []
                    if t == 3:
                        p.wait_lg(0)
                        if s < 15: p.wait_tags(self.tags(wname(s+1), bname(s+1)))
                        e("s_barrier")
                        self.release(wname(s))
                        if s & 1: self.release(bname(s)[0])
                        if pre_barrier_hook: pre_barrier_hook(s)
                        if s < 15: p.many(gemm_reads(buf ^ 1, wname(s+1), bread(s+1), 0, aWset))
                        self.step_budget = o['cap']
                    else:
                        p.many(gemm_reads(buf ^ 1, wname(s), bread(s), t + 1, aWset))
                    ng = 1 if self.step_budget > 0 else 0
                    gr = self.next_granules(ng); self.step_budget -= len(gr)
                    for bt in range(2):
                        c = "0" if first else v(acc + 16*bt, 16)
                        e(f"v_mfma_f32_32x32x16_bf16 {v(acc + 16*bt, 16)}, {a(fA[buf], 4)}, {a(fB[buf][bt], 4)}, {c}")
                        if bt == 0 and gr: p.many(gr[0])
        self.step_budget = o['cap']
        def xread(s):
            def f(t, bt):
                return self.ldsaddr(aX[t], f"XX{s>>1}", (s & 1) * 8192 + bt * 4096)
            return f
        gemm_phase('p1', lambda s: f"W{s}", lambda s: (f"XX{s>>1}", s & 1), xread, aW)
        self.stamp('p1_end')
        for r in aW: V.release(r)
        for s_ in aX:
            for r in s_: V.release(r)
        V.release(self.vX, 2); V.release(self.vW, 2)
        self.phase = 2

        e(f"v_readfirstlane_b32 s52, {v(vE)}")
        e("s_mul_i32 s52, s52, 0x9E3779B1"); e("s_add_u32 s52, s52, 0x7F4A7C15")
        self.vTag = V.alloc(1); self.vPoll = V.alloc(1)
        e(f"v_mov_b32 {v(self.vTag)}, s52")
        V.release(vE)
        q = V.alloc(16, align=4)
        for k in range(16):
            e(f"v_cvt_pk_bf16_f32 {v(q+k)}, {v(acc+2*k)}, {v(acc+2*k+1)}")
        vLin2 = V.alloc(1)
        e(f"v_add_u32 {v(vLin2)}, 0x20000, {v(vLin)}")
        QQ = QQ_DG * DG
        assert self.dg9_free; self.dg9_free = False
        e(f"s_lshl_b32 s56, s2, 13"); e(f"s_add_u32 s56, s56, {WS_QD}")
        for i2 in range(2):
            e(f"buffer_store_dwordx4 {v(q+8+4*i2, 4)}, {v(vLin)}, s[32:35], s56 offen offset:{i2*1024} sc1", 'qst')
        for i2 in range(2):
            e(f"ds_write_b128 {v(vLin2)}, {v(q+4*i2, 4)} offset:{QQ - 0x20000 + i2*1024}")
        self.issue(o['n1'])
        vF = V.alloc(1); vPa = V.alloc(1)
        e(f"s_lshl_b32 s56, s2, 7"); e("s_lshl_b32 s58, s39, 2"); e("s_add_u32 s56, s56, s58"); e(f"s_add_u32 s56, s56, {WS_QF}")
        e(f"v_mov_b32 {v(vF)}, s56")
        e(f"s_xor_b32 s56, s2, 8"); e("s_lshl_b32 s56, s56, 7"); e(f"s_add_u32 s56, s56, {WS_QF}")
        e(f"v_and_b32 {v(t0)}, 3, {v(vL)}"); e(f"v_lshl_add_u32 {v(vPa)}, {v(t0)}, 2, s56")
        p.wait_tags({'qst'})
        self.flag_store(vF)
        aK = []
        e(f"v_and_b32 {v(t4)}, 31, {v(vL)}")
        e(f"v_and_b32 {v(t5)}, 15, {v(vL)}")
        e(f"v_xor_b32 {v(t5)}, {v(t5)}, {v(vTr_kh)}")
        e(f"v_lshlrev_b32 {v(t5)}, 4, {v(t5)}")
        e(f"v_lshl_add_u32 {v(t6)}, {v(t4)}, 8, {v(t5)}")
        e("s_lshl_b32 s56, s43, 13")
        e(f"v_add_u32 {v(t6)}, s56, {v(t6)}")
        for t in range(8):
            e(f"v_xor_b32 {v(t7)}, {32*t}, {v(t6)}")
            aK.append(three('aK', t7))
        aV = []
        for ai in range(4):
            e("s_lshl_b32 s56, s43, 1"); e(f"s_xor_b32 s56, s56, {ai}")
            e(f"v_xor_b32 {v(t4)}, s56, {v(vTr_r)}")
            e(f"v_lshlrev_b32 {v(t4)}, 6, {v(t4)}")
            e(f"v_lshl_add_u32 {v(t4)}, {v(vTr_r)}, 8, {v(t4)}")
            e(f"v_lshl_add_u32 {v(t4)}, {v(vTr_kh)}, 10, {v(t4)}")
            e(f"v_lshl_add_u32 {v(t4)}, {v(vTr_nh)}, 5, {v(t4)}")
            e(f"v_add_u32 {v(t4)}, {v(t4)}, {v(vTr_cp)}")
            e("s_lshl_b32 s56, s43, 13")
            e(f"v_add_u32 {v(t4)}, s56, {v(t4)}")
            aV.append(three('aV', t4))
        aQ = V.alloc(1)
        e("s_lshl_b32 s56, s42, 13"); e(f"s_add_u32 s56, s56, 0x20000")
        e(f"v_add_u32 {v(aQ)}, s56, {v(vL16)}")
        self.issue(99)
        self.stamp('q_flag')
        self.poll(vPa)
        self.stamp('q_polled')
        e(f"s_add_u32 m0, s44, {QQ + 8192}")
        e(f"s_xor_b32 s56, s2, 8"); e("s_lshl_b32 s56, s56, 13"); e(f"s_add_u32 s56, s56, {WS_QD}")
        for i2 in range(2):
            e(f"buffer_load_dwordx4 {v(vLin)}, s[32:35], s56 offen offset:{i2*1024} sc1 lds", 'qp')
        p.wait_tags({'qp'} | self.tags('K0')); p.wait_lg(0); e("s_barrier")
        V.release(q, 16); V.release(acc, 32); V.release(vLin2)
        for r in fA: A.release(r, 4)
        for x in fB:
            for r in x: A.release(r, 4)
        fQ = A.alloc(32, align=4)
        for T_ in range(8):
            e(f"ds_read_b128 {a(fQ+4*T_, 4)}, {v(aQ)} offset:{QQ - 0x20000 + T_*1024}")
        self.stamp('q_ready')

        S = V.alloc(128, align=4)
        fK = A.alloc(32, align=4)
        vM = V.alloc(1)
        DK = 4
        def kread(n):
            s, t = n >> 3, n & 7
            r, imm = self.ldsaddr(aK[t], f"K{s}", 0)
            return f"ds_read_b128 {a(fK + 4*(n & 7), 4)}, {v(r)} offset:{imm}"
        for n in range(DK): e(kread(n))
        def maxops(s, first):
            ops = []
            for k in range(8):
                x, y = S + 16*s + 2*k, S + 16*s + 2*k + 1
                if first and k == 0: ops.append(f"v_max_f32 {v(vM)}, {v(x)}, {v(y)}")
                else: ops.append(f"v_max3_f32 {v(vM)}, {v(vM)}, {v(x)}, {v(y)}")
            return ops
        fV = A.alloc(32, align=4)
        DV = 4
        def vread(n):
            s, f = n >> 3, n & 7
            u, ai = f >> 2, f & 3
            ops = []
            for rd in range(2):
                r, imm = self.ldsaddr(aV[ai], f"V{s}", (4*u + 2*rd) * 1024)
                ops.append(f"ds_read_b64_tr_b16 {a(fV + 4*f + 2*rd, 2)}, {v(r)} offset:{imm}")
            return ops
        for s in range(8):
            mx = maxops(s-1, s == 1) if s > 0 else []
            gr = self.next_granules(2)
            for t in range(8):
                n = 8*s + t
                if t == 8 - DK:
                    if s < 7: p.wait_tags(self.tags(f"K{s+1}"))
                    else: p.wait_tags(self.tags("V0"))
                    e("s_barrier")
                    if s > 0: self.release(f"K{s-1}")
                    gr += self.next_granules(o['cap'] - 2)
                c = "0" if t == 0 else v(S + 16*s, 16)
                e(f"v_mfma_f32_32x32x16_bf16 {v(S + 16*s, 16)}, {a(fK + 4*t, 4)}, {a(fQ + 4*t, 4)}, {c}")
                if n + DK < 64: e(kread(n + DK))
                elif s == 7:
                    p.many(vread(n + DK - 64))
                if t >= 2 and mx:
                    e(mx.pop(0))
                    if t >= 6 and mx: e(mx.pop(0))
                if gr and t in (1, 3, 5, 7): p.many(gr.pop(0))
            assert not mx and not gr, (mx, gr)
        self.stamp('qk_end')
        p.many(maxops(7, False))
        vM2 = V.alloc(1); vNM = V.alloc(1)
        e(f"v_mov_b32 {v(vM2)}, {v(vM)}")
        e(f"v_permlane32_swap_b32 {v(vM)}, {v(vM2)}")
        e(f"v_max_f32 {v(vM)}, {v(vM)}, {v(vM2)}")
        C = 128 ** -0.5 * math.log2(math.e)
        import struct
        cbits = struct.unpack('<I', struct.pack('<f', C))[0]
        e(f"s_mov_b32 s61, {cbits:#x}")
        e(f"v_mul_f32 {v(vM)}, s61, {v(vM)}")
        e(f"v_sub_f32 {v(vNM)}, 0, {v(vM)}")
        def smops(s):
            b = S + 16*s
            ops = []
            for u in range(2):
                for k in range(8): ops.append(f"v_fma_f32 {v(b+8*u+k)}, {v(b+8*u+k)}, s61, {v(vNM)}")
                for k in range(8): ops.append(f"v_exp_f32 {v(b+8*u+k)}, {v(b+8*u+k)}")
                for k in range(4): ops.append(f"v_cvt_pk_bf16_f32 {v(b+4*u+k)}, {v(b+8*u+2*k)}, {v(b+8*u+2*k+1)}")
            return ops
        p.many(smops(0))
        oOwn = V.alloc(32, align=4)
        oSnd = A.alloc(32, align=4)
        lAcc = A.alloc(16, align=4)
        ones = A.alloc(4, align=4)
        e(f"v_mov_b32 {v(t0)}, 0x3f803f80")
        for k in range(4): e(f"v_accvgpr_write_b32 {a(ones+k)}, {v(t0)}")
        def oacc(ai): return v(oOwn + 16*ai, 16) if ai < 2 else a(oSnd + 16*(ai-2), 16)
        self.rs = None
        for s in range(8):
            sm = smops(s+1) if s < 7 else []
            if s == 5: self.hold = 2
            gr = self.next_granules(2)
            nslot = 10; slot = 0
            for f in range(8):
                n = 8*s + f
                u, ai = f >> 2, f & 3
                if f == 8 - DV:
                    if s < 7: p.wait_tags(self.tags(f"V{s+1}"))
                    e("s_barrier")
                    if s > 0: self.release(f"V{s-1}")
                    else: self.release("K7")
                    gr += self.next_granules(o['cap'] - 2)
                P_ = v(S + 16*s + 4*u, 4)
                c = "0" if (s == 0 and u == 0) else oacc(ai)
                e(f"v_mfma_f32_32x32x16_bf16 {oacc(ai)}, {a(fV + 4*f, 4)}, {P_}, {c}")
                if n + DV < 64: p.many(vread(n + DV))
                k = (len(sm) + (nslot - slot) - 1) // (nslot - slot)
                for _ in range(min(k, len(sm))): e(sm.pop(0))
                slot += 1
                if ai == 3:
                    c = "0" if (s == 0 and u == 0) else a(lAcc, 16)
                    e(f"v_mfma_f32_32x32x16_bf16 {a(lAcc, 16)}, {a(ones, 4)}, {P_}, {c}")
                    k = (len(sm) + (nslot - slot) - 1) // (nslot - slot)
                    for _ in range(min(k, len(sm))): e(sm.pop(0))
                    slot += 1
                if gr and f in (1, 3, 5, 7): p.many(gr.pop(0))
            assert not sm and not gr
        self.stamp('pv_end')
        self.hold = 0
        assert len(self.free) >= 2, self.free
        rs = [self.free.pop(0), self.free.pop(0)]
        aRw = V.alloc(1); aRr = V.alloc(1); aSw = V.alloc(1); aSr = V.alloc(1)
        e("s_cmp_eq_u32 s42, 0")
        e(f"s_mov_b32 s58, {rs[1]*DG}")
        e(f"s_cselect_b32 s56, {rs[0]*DG}, s58")
        e("s_lshl_b32 s58, s43, 13"); e("s_add_u32 s59, s56, s58")
        e(f"v_add_u32 {v(aRw)}, s59, {v(vL16)}")
        e("s_xor_b32 s58, s58, 8192"); e("s_add_u32 s59, s56, s58")
        e(f"v_add_u32 {v(aRr)}, s59, {v(vL16)}")
        e(f"v_lshlrev_b32 {v(t0)}, 2, {v(vL)}")
        e("s_lshl_b32 s58, s39, 9"); e(f"s_add_u32 s59, s58, {QQ}")
        e(f"v_add_u32 {v(aSw)}, s59, {v(t0)}")
        e("s_xor_b32 s58, s58, 512"); e(f"s_add_u32 s59, s58, {QQ}")
        e(f"v_add_u32 {v(aSr)}, s59, {v(t0)}")
        e(f"ds_write_b32 {v(aSw)}, {v(vM)}")
        for k in range(8):
            e(f"ds_write_b128 {v(aRw)}, {a(oSnd + 4*k, 4)} offset:{k*1024}")
        e(f"ds_write_b32 {v(aSw)}, {a(lAcc)} offset:256")
        vLo = V.alloc(1)
        e(f"v_accvgpr_read_b32 {v(vLo)}, {a(lAcc)}")
        p.wait_lg(0); e("s_barrier")
        self.release("V7")
        vMp = V.alloc(1); vLp = V.alloc(1)
        e(f"ds_read_b32 {v(vMp)}, {v(aSr)}")
        e(f"ds_read_b32 {v(vLp)}, {v(aSr)} offset:256")
        oP = S
        for k in range(8):
            e(f"ds_read_b128 {v(oP + 4*k, 4)}, {v(aRr)} offset:{k*1024}")
        self.issue(2)
        vMx = V.alloc(1); vF0 = V.alloc(1); vF1 = V.alloc(1)
        e(f"v_max_f32 {v(vMx)}, {v(vM)}, {v(vMp)}")
        e(f"v_sub_f32 {v(vF0)}, {v(vM)}, {v(vMx)}")
        e(f"v_sub_f32 {v(vF1)}, {v(vMp)}, {v(vMx)}")
        e(f"v_exp_f32 {v(vF0)}, {v(vF0)}")
        e(f"v_exp_f32 {v(vF1)}, {v(vF1)}")
        e(f"v_mul_f32 {v(vLo)}, {v(vLo)}, {v(vF0)}")
        e(f"v_fma_f32 {v(vLo)}, {v(vLp)}, {v(vF1)}, {v(vLo)}")
        e(f"v_rcp_f32 {v(vLo)}, {v(vLo)}")
        e(f"v_mul_f32 {v(vF0)}, {v(vF0)}, {v(vLo)}")
        e(f"v_mul_f32 {v(vF1)}, {v(vF1)}, {v(vLo)}")
        for k in range(32): e(f"v_mul_f32 {v(oOwn+k)}, {v(oOwn+k)}, {v(vF0)}")
        for k in range(32): e(f"v_fma_f32 {v(oOwn+k)}, {v(oP+k)}, {v(vF1)}, {v(oOwn+k)}")
        ob = S + 32
        for k in range(16): e(f"v_cvt_pk_bf16_f32 {v(ob+k)}, {v(oOwn+2*k)}, {v(oOwn+2*k+1)}")
        e("s_xor_b32 s56, s37, s42"); e("s_lshl_b32 s56, s56, 1"); e("s_add_u32 s56, s56, s43")
        e("s_lshl_b32 s56, s56, 13"); e("s_lshl_b32 s58, s41, 10"); e("s_add_u32 s56, s56, s58")
        e("s_add_u32 s56, s56, 1024")
        e("s_add_u32 s58, s56, 4096")
        for T_ in range(4):
            so = 's56' if T_ < 2 else 's58'
            e(f"buffer_store_dwordx4 {v(ob+4*T_, 4)}, {v(vL16)}, s[80:83], {so} offen offset:{(T_&1)*2048} sc1", 'ost')
        p.wait_lg(0); e("s_barrier")
        self.free += rs; self.dg9_free = True; self.phase = 3
        e(f"s_lshl_b32 s56, s60, 7"); e(f"s_add_u32 s56, s56, {WS_OF}")
        e(f"v_and_b32 {v(t0)}, 31, {v(vL)}"); e(f"v_lshl_add_u32 {v(vPa)}, {v(t0)}, 2, s56")
        e("s_lshl_b32 s58, s37, 4"); e("s_add_u32 s56, s56, s58"); e("s_lshl_b32 s58, s39, 2"); e("s_add_u32 s56, s56, s58")
        e(f"v_mov_b32 {v(vF)}, s56")
        self.hold = 2
        self.issue(o['n1'])
        p.wait_tags({'ost'})
        self.flag_store(vF)
        self.issue(99)
        for s_ in aK + aV:
            for r in s_: V.release(r)
        V.release(S, 128); V.release(oOwn, 32); A.release(oSnd, 32); A.release(lAcc, 16); A.release(ones, 4)
        A.release(fQ, 32); A.release(fK, 32); A.release(fV, 32)
        e("s_and_b32 s56, s36, 1")
        wbase(t6, 's56'); aWO = three('aWO', t6)
        aL = three('aL', vL16)
        self.stamp('o_flag')
        self.poll(vPa)
        self.stamp('o_polled')
        self.hold = 0
        self.gates.discard('osync')
        self.issue(4)

        acc = V.alloc(32, align=4)
        fA[:] = [A.alloc(4, align=4) for _ in range(2)]
        fB[:] = [[A.alloc(4, align=4) for _ in range(2)] for _ in range(2)]
        self.step_budget = o['cap']
        def oread(s):
            def f(t, bt):
                return self.ldsaddr(aL, f"OO{s>>1}", (s & 1) * 8192 + (2*t + bt) * 1024)
            return f
        gemm_phase('p3', lambda s: f"WO{s}", lambda s: (f"OO{s>>1}", s & 1), oread, aWO)
        self.stamp('p3_end')
        for ps in range(1, 4):
            e(f"s_xor_b32 s56, s2, {ps}"); e("s_lshl_b32 s56, s56, 15"); e(f"s_add_u32 s56, s56, {WS_PD + (ps-1)*8192}")
            for hf in range(2):
                e(f"buffer_store_dwordx4 {v(acc + 8*ps + 4*hf, 4)}, {v(vLin)}, s[32:35], s56 offen offset:{hf*1024} sc1", 'pst')
        e(f"v_and_b32 {v(t0)}, 3, {v(vL)}")
        e(f"v_max_u32 {v(t0)}, 1, {v(t0)}")
        e(f"v_xor_b32 {v(t1)}, s2, {v(t0)}")
        e(f"v_lshlrev_b32 {v(t1)}, 7, {v(t1)}")
        e(f"v_lshl_add_u32 {v(t1)}, {v(t0)}, 4, {v(t1)}")
        e("s_lshl_b32 s58, s39, 2"); e(f"s_add_u32 s58, s58, {WS_PF}")
        e(f"v_add_u32 {v(vF)}, s58, {v(t1)}")
        e(f"s_lshl_b32 s56, s2, 7"); e("s_add_u32 s56, s56, s58")
        e(f"v_lshl_add_u32 {v(vPa)}, {v(t0)}, 4, s56")
        vOut = V.alloc(1)
        e("s_lshr_b32 s56, s36, 1"); e("s_lshl_b32 s56, s56, 5"); e("s_lshl_b32 s58, s38, 6"); e("s_add_u32 s56, s56, s58")
        e(f"v_and_b32 {v(t2)}, 31, {v(vL)}"); e(f"v_add_u32 {v(t2)}, s56, {v(t2)}"); e(f"v_lshlrev_b32 {v(t2)}, 11, {v(t2)}")
        e("s_lshl_b32 s56, s37, 7"); e("s_lshl_b32 s58, s39, 5"); e("s_add_u32 s56, s56, s58")
        e("s_and_b32 s58, s36, 1"); e("s_lshl_b32 s58, s58, 4"); e("s_add_u32 s56, s56, s58"); e("s_lshl_b32 s56, s56, 1")
        e(f"v_lshl_add_u32 {v(t2)}, {v(vTr_kh)}, 4, {v(t2)}")
        e(f"v_add_u32 {v(vOut)}, s56, {v(t2)}")
        p.wait_tags({'pst'})
        e("s_mov_b64 exec, 14")
        e(f"buffer_store_dword {v(self.vTag)}, {v(vF)}, s[32:35], 0 offen sc1")
        e("s_mov_b64 exec, -1")
        self.stamp('p_flag')
        self.poll(vPa)
        self.stamp('p_polled')
        pr = V.alloc(24, align=4)
        for ps in range(1, 4):
            e(f"s_lshl_b32 s56, s2, 15"); e(f"s_add_u32 s56, s56, {WS_PD + (ps-1)*8192}")
            for hf in range(2):
                e(f"buffer_load_dwordx4 {v(pr + 8*(ps-1) + 4*hf, 4)}, {v(vLin)}, s[32:35], s56 offen offset:{hf*1024} sc1")
        for ps in range(3):
            for k in range(8): e(f"v_add_f32 {v(acc+k)}, {v(acc+k)}, {v(pr + 8*ps + k)}")
        for k in range(4): e(f"v_cvt_pk_bf16_f32 {v(pr+k)}, {v(acc+2*k)}, {v(acc+2*k+1)}")
        e(f"buffer_store_dwordx4 {v(pr, 4)}, {v(vOut)}, s[28:31], 0 offen")
        e("s_and_b32 s56, s2, 0x3b")
        e("s_or_b32 s56, s56, s39")
        p.raw("s_cmp_lg_u32 s56, 0")
        p.raw("s_cbranch_scc1 L_fin")
        e(f"s_lshl_b32 s56, s38, 8")
        e(f"v_mov_b32 {v(t0)}, s56")
        self.flag_store(t0)
        p.label("L_fin")
        self.stamp('end')
        p.raw("s_waitcnt vmcnt(0)")
        if o['probe']:
            p.raw("s_sub_u32 s86, s88, s86")
            p.raw(f"s_mul_i32 s86, s86, {o['probe'][2]}")
            p.raw("s_memrealtime s[88:89]"); p.raw("s_waitcnt lgkmcnt(0)")
            p.raw("s_add_u32 s86, s86, s88")
            p.label("L_probe")
            p.raw("s_memrealtime s[88:89]"); p.raw("s_waitcnt lgkmcnt(0)")
            p.raw("s_sub_u32 s90, s88, s86")
            p.raw("s_cmp_lt_i32 s90, 0")
            p.raw("s_cbranch_scc1 L_probe")
        p.label("L_exit")
        p.raw("s_endpgm")
        assert self.si == len(self.stream), (self.si, len(self.stream))
        p.finalize()
        return self.text()

    def text(self):
        nv = 256; na = self.A.hi
        na = max(na, 4)
        total = nv + ((na + 7) // 8) * 8
        hdr = f"""; GQA block (Q projection, cached attention, output projection) as one persistent launch.
; @launch grid=(256,1,1) block=(256,1,1) lds=163840
.amdgcn_target "amdgcn-amd-amdhsa--gfx950"
.text
.globl {NAME}
.p2align 8
.type {NAME},@function
{NAME}:
"""
        ftr = f"""
.section .rodata,"a"
.p2align 6
.amdhsa_kernel {NAME}
  .amdhsa_next_free_vgpr 512
  .amdhsa_next_free_sgpr 96
  .amdhsa_accum_offset 256
  .amdhsa_group_segment_fixed_size 0
  .amdhsa_kernarg_size 64
  .amdhsa_user_sgpr_count 2
  .amdhsa_user_sgpr_kernarg_segment_ptr 1
  .amdhsa_system_sgpr_workgroup_id_x 1
.end_amdhsa_kernel
"""
        return hdr + self.p.text() + ftr

if __name__ == "__main__":
    import json
    out = sys.argv[1] if len(sys.argv) > 1 else "standalone__gqa_block_cached__near_ridge.s"
    kw = json.loads(sys.argv[2]) if len(sys.argv) > 2 else {}
    g = Gen(**kw)
    txt = g.build()
    open(out, "w").write(txt)
    if g.o['stamps']: json.dump(g.stamp_names, open(out[:-2] + ".stamps.json", "w"))
    print("written", out, "instr counts", g.p.count(), "nops", g.p.stats, "V hi", g.V.hi, "A hi", g.A.hi, "stamps", g.stamp_names)
```

```python
import sys, math
sys.path.insert(0, 'tools')
from asmlib import Prog, RegAlloc

NAME = "standalone__gqa_block_cached__near_ridge_kernel"

WS_E   = 0x0
WS_QF  = 0x10000
WS_OF  = 0x20000
WS_PF  = 0x30000
WS_DBG = 0x40000
WS_QD  = 0x100000
WS_OD  = 0x400000
WS_PD  = 0x800000
WS_SIZE = 0x1000000
DG = 16384
NDG = 10
QQ_DG = 9

DEFAULTS = dict(
    cap=4,
    pro=6,
    spin=200000,
    stagger=True,
    nt_w='', nt_kv='', nt_x='',
    prefetch_code=True,
    stamps=False,
    stop_after=None,
    n1=4,
    bwtest=None,
    probe=None,
)

class Gen:
    def __init__(self, **kw):
        self.o = dict(DEFAULTS); self.o.update(kw)
        self.p = Prog()
        self.V = RegAlloc('v', 0, 256)
        self.A = RegAlloc('a', 0, 256)
        self.nlabel = 0
        self.stamp_i = 0

    def e(self, t, tag=None): return self.p.e(t, tag)
    def v(self, r, n=1): return self.V.r(r, n)
    def a(self, r, n=1): return self.A.r(r, n)
    def lab(self, s):
        self.nlabel += 1; return f"L_{s}_{self.nlabel}"
    def stamp(self, name):
        pr = self.o['probe']
        if pr and name in pr[:2]:
            r = 86 if name == pr[0] else 88
            self.p.wait_lg(0)
            self.e(f"s_memrealtime s[{r}:{r+1}]")
            self.p.raw("s_waitcnt lgkmcnt(0)")
        if not self.o['stamps']: return
        k = self.stamp_i; self.stamp_i += 1
        self.stamp_names.append(name)
        p = self.p
        p.wait_lg(0)
        self.e("s_memrealtime s[84:85]")
        p.raw("s_waitcnt lgkmcnt(0)")
        self.e(f"v_mov_b32 {self.v(self.vStamp)}, s84")
        self.e("s_mov_b64 exec, 1")
        self.e(f"buffer_store_dword {self.v(self.vStamp)}, {self.v(self.vStampA)}, s[32:35], 0 offen offset:{k*4}")
        self.e("s_mov_b64 exec, -1")

    def init_alloc(self):
        self.free = list(range(NDG - 1))
        self.dg9_free = True
        self.chunks = {}
        self.stream = []
        self.si = 0
    def build_stream(self):
        S = []
        def g(chunk, gi, kind, **kw): S.append(dict(chunk=chunk, gi=gi, kind=kind, **kw))
        for m in range(8):
            g(f"XX{m}", 0, 'X', stage=2*m)
            g(f"W{2*m}", 0, 'W'); g(f"W{2*m}", 1, 'W')
            g(f"XX{m}", 1, 'X', stage=2*m+1)
            g(f"W{2*m+1}", 0, 'W'); g(f"W{2*m+1}", 1, 'W')
        for s in range(8):
            g(f"K{s}", 0, 'K'); g(f"K{s}", 1, 'K')
        for s in range(8):
            g(f"V{s}", 0, 'V'); g(f"V{s}", 1, 'V')
        order = [('WO', s) for s in range(7)] + [('OO', 0), ('OO', 1), ('WO', 7)]
        nxt = 8
        for m in range(2, 8):
            order.append(('OO', m))
            for _ in range(2):
                if nxt < 16: order.append(('WO', nxt)); nxt += 1
        while nxt < 16: order.append(('WO', nxt)); nxt += 1
        for kind, s in order:
            if kind == 'WO':
                g(f"WO{s}", 0, 'WO'); g(f"WO{s}", 1, 'WO')
            else:
                g(f"OO{s}", 0, 'O', gate='osync'); g(f"OO{s}", 1, 'O', gate='osync')
        self.stream = S
        self.gates = set(['osync'])
        self.hold = 0
    def alloc_dg(self, chunk):
        if chunk in self.chunks: return self.chunks[chunk]
        allow9 = self.dg9_free and self.dg9_ok(chunk)
        avail = len(self.free) + (1 if allow9 else 0)
        if len(self.free) - self.hold <= 0 and not allow9: return None
        if allow9:
            d = QQ_DG; self.dg9_free = False
        else:
            d = self.free.pop(0)
        self.chunks[chunk] = d
        return d
    def dg9_ok(self, chunk):
        if self.phase == 1:
            if chunk.startswith('W') and not chunk.startswith('WO'): return int(chunk[1:]) <= 12
            if chunk.startswith('XX'): return int(chunk[2:]) <= 5
            return False
        if self.phase == 3: return True
        return False
    def release(self, chunk):
        d = self.chunks[chunk]
        if d == QQ_DG: self.dg9_free = True
        else: self.free.append(d)
    def next_granules(self, n):
        out = []
        while n > 0 and self.si < len(self.stream):
            gd = self.stream[self.si]
            if gd.get('gate') in self.gates: break
            d = self.alloc_dg(gd['chunk'])
            if d is None: break
            out.append(self.granule_ops(gd, d))
            self.si += 1; n -= 1
        return out
    def granule_ops(self, gd, d):
        k = gd['kind']; lds = d * DG + gd['gi'] * 8192
        tag = (gd['chunk'], gd['gi'])
        ops = [f"s_add_u32 m0, s44, {lds}"]
        V = self.v
        if k == 'X':
            ops += ["s_add_u32 s45, s45, 128", "s_and_b32 s45, s45, 2047"]
            f = self.o['nt_x']
            ops += [(f"buffer_load_dwordx4 {V(self.vX)}, s[8:11], s45 offen {f} lds", tag),
                    (f"buffer_load_dwordx4 {V(self.vX+1)}, s[8:11], s45 offen offset:1024 {f} lds", tag)]
        elif k == 'W':
            ops += ["s_add_u32 s46, s46, 262144", "s_and_b32 s46, s46, 0x7fffff"]
            f = self.o['nt_w']
            ops += [(f"buffer_load_dwordx4 {V(self.vW)}, s[20:23], s46 offen {f} lds", tag),
                    (f"buffer_load_dwordx4 {V(self.vW+1)}, s[20:23], s46 offen offset:1024 {f} lds", tag)]
        elif k in 'KV':
            cur = 's47' if k == 'K' else 's48'
            srd = 's[12:15]' if k == 'K' else 's[16:19]'
            r0, r1 = (self.vK, self.vK+1) if k == 'K' else (self.vV, self.vV)
            f = self.o['nt_kv']
            if gd['gi'] == 0:
                ops += [f"s_add_u32 {cur}, {cur}, 8192", f"s_and_b32 {cur}, {cur}, 0xffff"]
                so = cur
            else:
                ops += [f"s_add_u32 s51, {cur}, 65536"]
                so = 's51'
            ops += [(f"buffer_load_dwordx4 {V(r0)}, {srd}, {so} offen {f} lds", tag),
                    (f"buffer_load_dwordx4 {V(r1)}, {srd}, {so} offen offset:1024 {f} lds", tag)]
        elif k == 'WO':
            ops += ["s_add_u32 s49, s49, 65536", "s_and_b32 s49, s49, 0x1fffff"]
            f = self.o['nt_w']
            ops += [(f"buffer_load_dwordx4 {V(self.vWO)}, s[24:27], s49 offen {f} lds", tag),
                    (f"buffer_load_dwordx4 {V(self.vWO+1)}, s[24:27], s49 offen offset:1024 {f} lds", tag)]
        elif k == 'O':
            ops += ["s_add_u32 s50, s50, 8192", "s_and_b32 s50, s50, 0x1ffff"]
            ops += [(f"buffer_load_dwordx4 {V(self.vO)}, s[80:83], s50 offen sc1 lds", tag),
                    (f"buffer_load_dwordx4 {V(self.vO+1)}, s[80:83], s50 offen offset:1024 sc1 lds", tag)]
        return ops
    def issue(self, n):
        for ops in self.next_granules(n): self.p.many(ops)
    def tags(self, *chunks):
        t = set()
        for c in chunks:
            if isinstance(c, tuple): t.add(c)
            else: t.add((c, 0)); t.add((c, 1))
        return t
    def ldsaddr(self, base_regs, chunk_or_abs, inner):
        a = (self.chunks[chunk_or_abs] * DG if isinstance(chunk_or_abs, str) else chunk_or_abs) + inner
        st = a // 65536
        return base_regs[st], a - st * 65536

    @staticmethod
    def spread(slots, fillers):
        flat = []
        for f in fillers: flat.append(f)
        n = len(slots)
        res = [[] for _ in range(n)]
        for k, f in enumerate(flat):
            res[min(n - 1, (k * n) // max(1, len(flat)))].append(f)
        return res

    def poll(self, vaddr):
        p = self.p
        L = self.lab("poll"); D = self.lab("pdone")
        self.e(f"s_mov_b32 s54, {self.o['spin']}")
        p.label(L)
        p.raw(f"buffer_load_dword {self.v(self.vPoll)}, {self.v(vaddr)}, s[32:35], 0 offen sc1")
        p.raw("s_waitcnt vmcnt(0)")
        p.forget()
        p.raw(f"v_cmp_ne_u32 vcc, s52, {self.v(self.vPoll)}")
        p.raw(f"s_cbranch_vccz {D}")
        p.raw("s_sub_u32 s54, s54, 1")
        p.raw(f"s_cbranch_scc0 {L}")
        p.label(D)
    def flag_store(self, vaddr):
        self.e("s_mov_b64 exec, 1")
        self.e(f"buffer_store_dword {self.v(self.vTag)}, {self.v(vaddr)}, s[32:35], 0 offen sc1")
        self.e("s_mov_b64 exec, -1")

    def build(self):
        o = self.o; p = self.p; V = self.V; A = self.A; v = self.v; a = self.a; e = self.e
        self.stamp_names = []
        self.init_alloc(); self.build_stream(); self.phase = 1
        V.alloc(1, name='v0')
        p.raw("s_cmp_ge_u32 s2, 256")
        p.raw("s_cbranch_scc1 L_exit")
        if o['probe'] and 'entry' in o['probe'][:2]:
            p.raw("s_memrealtime s[86:87]"); p.raw("s_waitcnt lgkmcnt(0)")
        p.raw("s_load_dwordx16 s[64:79], s[0:1], 0")
        T = [V.alloc(1) for _ in range(8)]
        t0, t1, t2, t3, t4, t5, t6, t7 = T
        vL = V.alloc(1, name='lane')
        e(f"v_and_b32 {v(vL)}, 63, v0")
        e(f"v_lshrrev_b32 {v(t0)}, 6, v0")
        e(f"v_readfirstlane_b32 s39, {v(t0)}")
        e("s_and_b32 s36, s2, 3")
        e("s_lshr_b32 s37, s2, 3")
        e("s_and_b32 s37, s37, 7")
        e("s_lshr_b32 s51, s2, 6")
        e("s_bfe_u32 s53, s2, 0x10002")
        e("s_lshl_b32 s38, s53, 2")
        e("s_add_u32 s38, s38, s51")
        e("s_lshr_b32 s40, s37, 1")
        e("s_and_b32 s41, s37, 1")
        e("s_lshr_b32 s42, s39, 1")
        e("s_and_b32 s43, s39, 1")
        e("s_lshl_b32 s44, s39, 11")
        if o['stagger']:
            e("s_lshl_b32 s55, s51, 2"); e("s_lshl_b32 s56, s37, 1"); e("s_add_u32 s55, s55, s56"); e("s_and_b32 s55, s55, 15")
            e("s_lshl_b32 s57, s40, 1")
        else:
            e("s_mov_b32 s55, 0"); e("s_mov_b32 s57, 0")
        e("s_lshl_b32 s45, s55, 7"); e("s_sub_u32 s45, s45, 128"); e("s_and_b32 s45, s45, 2047")
        e("s_lshl_b32 s46, s55, 19"); e("s_sub_u32 s46, s46, 262144"); e("s_and_b32 s46, s46, 0x7fffff")
        e("s_lshl_b32 s47, s57, 13"); e("s_sub_u32 s47, s47, 8192"); e("s_and_b32 s47, s47, 0xffff")
        e("s_mov_b32 s48, s47")
        e("s_lshl_b32 s49, s55, 17"); e("s_sub_u32 s49, s49, 65536"); e("s_and_b32 s49, s49, 0x1fffff")
        e("s_lshl_b32 s50, s55, 13"); e("s_sub_u32 s50, s50, 8192"); e("s_and_b32 s50, s50, 0x1ffff")

        self.vX = V.alloc(2); self.vW = V.alloc(2); self.vWO = V.alloc(2); self.vK = V.alloc(2); self.vV = V.alloc(1)
        self.vO = V.alloc(2); vLin = V.alloc(1); vL16 = V.alloc(1)
        e(f"v_lshlrev_b32 {v(vL16)}, 4, {v(vL)}")
        e(f"v_add_u32 {v(vLin)}, s44, {v(vL16)}")
        e(f"v_lshrrev_b32 {v(t0)}, 4, {v(vL)}")
        e(f"v_bfe_u32 {v(t1)}, {v(vL)}, 2, 2")
        e(f"v_xor_b32 {v(t1)}, {v(t1)}, {v(t0)}")
        e(f"v_lshlrev_b32 {v(t1)}, 6, {v(t1)}")
        e(f"v_and_b32 {v(t2)}, 3, {v(vL)}")
        e(f"v_lshl_add_u32 {v(t1)}, {v(t2)}, 4, {v(t1)}")
        e("s_lshl_b32 s56, s39, 3")
        e(f"v_add_u32 {v(t2)}, s56, {v(t0)}")
        e(f"v_lshl_add_u32 {v(self.vW)}, {v(t2)}, 13, {v(t1)}")
        e(f"v_add_u32 {v(self.vW+1)}, {4*8192-1024}, {v(self.vW)}")
        e(f"v_lshl_add_u32 {v(self.vWO)}, {v(t2)}, 11, {v(t1)}")
        e(f"v_add_u32 {v(self.vWO+1)}, {4*2048-1024}, {v(self.vWO)}")
        e(f"v_lshl_add_u32 {v(self.vV)}, {v(t2)}, 8, {v(t1)}")
        e(f"v_and_b32 {v(t3)}, 15, {v(vL)}")
        e("s_lshl_b32 s56, s43, 3")
        e(f"v_add_u32 {v(t4)}, s56, {v(t0)}")
        e(f"v_xor_b32 {v(t4)}, {v(t4)}, {v(t3)}")
        e(f"v_lshlrev_b32 {v(t5)}, 8, {v(t2)}")
        e(f"v_lshl_add_u32 {v(self.vK)}, {v(t4)}, 4, {v(t5)}")
        e(f"v_xor_b32 {v(self.vK+1)}, 64, {v(self.vK)}")
        e(f"v_lshrrev_b32 {v(t0)}, 3, {v(vL)}")
        e(f"v_and_b32 {v(t1)}, 7, {v(vL)}")
        e(f"v_lshrrev_b32 {v(t2)}, 1, {v(t0)}")
        e(f"v_xor_b32 {v(t1)}, {v(t1)}, {v(t2)}")
        e("s_lshl_b32 s56, s39, 4")
        e(f"v_add_u32 {v(t3)}, s56, {v(t0)}")
        e("s_lshl_b32 s56, s41, 5")
        e(f"v_xor_b32 {v(t3)}, s56, {v(t3)}")
        e(f"v_lshlrev_b32 {v(t3)}, 11, {v(t3)}")
        e(f"v_lshl_add_u32 {v(self.vX)}, {v(t1)}, 4, {v(t3)}")
        e(f"v_xor_b32 {v(self.vX+1)}, 64, {v(self.vX)}")
        e(f"v_add_u32 {v(self.vX+1)}, {8*2048-1024}, {v(self.vX+1)}")
        p.raw("s_waitcnt lgkmcnt(0)")
        def srd(d, ptr, off_expr_ops, size):
            for x in off_expr_ops: e(x)
            e(f"s_add_u32 s{d}, s{ptr}, s56"); e(f"s_addc_u32 s{d+1}, s{ptr+1}, 0")
            e(f"s_mov_b32 s{d+3}, 0x00020000")
            if isinstance(size, int): e(f"s_mov_b32 s{d+2}, {size}")
            else: e(size.replace('D2', f"s{d+2}"))
        if o['bwtest'] is not None:
            kb = o.get('bwkb', 32)
            e("s_mov_b32 s8, s68"); e("s_mov_b32 s9, s69"); e("s_mov_b32 s10, 0x800000"); e("s_mov_b32 s11, 0x20000")
            e(f"s_mul_i32 s56, s2, {kb*1024}")
            self.stamp('bw0')
            for k in range(kb // 4):
                e(f"s_add_u32 m0, s44, {(k % 16) * 8192}")
                e(f"s_add_u32 s58, s56, {k*4096}")
                e(f"buffer_load_dwordx4 {v(vLin)}, s[8:11], s58 offen {o['bwtest']} lds") if False else None
                e(f"v_add_u32 {v(t0)}, s58, {v(vL16)}")
                e(f"s_lshl_b32 s59, s39, 10")
                e(f"buffer_load_dwordx4 {v(t0)}, s[8:11], s59 offen {o['bwtest']} lds")
            p.wait_vm(0)
            e("s_barrier")
            self.stamp('bw1')
        srd(8, 64, ["s_lshl_b32 s56, s38, 17"], 131072)
        srd(20, 70, ["s_lshl_b32 s58, s36, 3", "s_add_u32 s58, s58, s37", "s_lshl_b32 s56, s58, 8"], "s_sub_u32 D2, 0x800000, s56")
        self.issue(o['pro'])
        srd(12, 66, ["s_lshl_b32 s59, s38, 1", "s_add_u32 s59, s59, s41", "s_lshl_b32 s59, s59, 2", "s_add_u32 s59, s59, s36", "s_lshl_b32 s56, s59, 17"], 131072)
        srd(16, 68, [], 131072)
        srd(24, 72, ["s_lshl_b32 s56, s36, 21", "s_lshl_b32 s58, s37, 8", "s_add_u32 s56, s56, s58"], "s_sub_u32 D2, 0x800000, s56")
        srd(28, 74, ["s_mov_b32 s56, 0"], 0x100000)
        srd(32, 78, [], WS_SIZE)
        srd(80, 78, ["s_and_b32 s60, s2, 7", "s_lshr_b32 s58, s2, 6", "s_lshl_b32 s58, s58, 3", "s_add_u32 s60, s60, s58",
                     "s_lshl_b32 s56, s60, 17", f"s_add_u32 s56, s56, {WS_OD - 1024}"], 131072 + 1024)
        vE = V.alloc(1)
        e(f"s_lshl_b32 s56, s38, 8")
        e(f"v_mov_b32 {v(t0)}, s56")
        e(f"buffer_load_dword {v(vE)}, {v(t0)}, s[32:35], 0 offen sc1")
        if o['prefetch_code']:
            p.raw("s_getpc_b64 s[62:63]")
            p.label("L_pc")
            e(f"s_lshr_b32 s56, s2, 3"); e("s_and_b32 s56, s56, 3"); e("s_lshl_b32 s56, s56, 13")
            e(f"v_lshlrev_b32 {v(t1)}, 7, {v(vL)}")
            e(f"v_add_u32 {v(t1)}, s56, {v(t1)}")
            e(f"v_min_u32 {v(t1)}, L_exit-L_pc, {v(t1)}")
            e(f"v_and_b32 {v(t1)}, 0xfffffffc, {v(t1)}")
            e(f"global_load_dword {v(t2)}, {v(t1)}, s[62:63]")
        e("s_lshr_b32 s56, s36, 1"); e("s_lshl_b32 s56, s56, 10")
        e(f"v_add_u32 {v(t3)}, 1024, {v(vLin)}")
        e(f"v_add_u32 {v(self.vO)}, s56, {v(t3)}")
        e(f"v_subrev_u32 {v(self.vO+1)}, s56, {v(t3)}")
        def three(name, expr_reg):
            r = V.alloc(3)
            e(f"v_mov_b32 {v(r)}, {v(expr_reg)}")
            e(f"v_add_u32 {v(r+1)}, 0x10000, {v(expr_reg)}")
            e(f"v_add_u32 {v(r+2)}, 0x20000, {v(expr_reg)}")
            return [r, r+1, r+2]
        vTr_r = V.alloc(1); vTr_cp = V.alloc(1); vTr_nh = V.alloc(1); vTr_kh = V.alloc(1)
        e(f"v_bfe_u32 {v(vTr_r)}, {v(vL)}, 2, 2")
        e(f"v_and_b32 {v(t4)}, 1, {v(vL)}"); e(f"v_lshlrev_b32 {v(t4)}, 4, {v(t4)}")
        e(f"v_bfe_u32 {v(t5)}, {v(vL)}, 1, 1"); e(f"v_lshl_add_u32 {v(vTr_cp)}, {v(t5)}, 3, {v(t4)}")
        e(f"v_bfe_u32 {v(vTr_nh)}, {v(vL)}, 4, 1")
        e(f"v_lshrrev_b32 {v(vTr_kh)}, 5, {v(vL)}")
        def wbase(dst, xor_nh_sgpr=None):
            e(f"v_xor_b32 {v(t4)}, s39, {v(vTr_r)}")
            e(f"v_lshlrev_b32 {v(t4)}, 6, {v(t4)}")
            e(f"v_lshl_add_u32 {v(t4)}, {v(vTr_r)}, 8, {v(t4)}")
            e(f"v_lshl_add_u32 {v(t4)}, {v(vTr_kh)}, 11, {v(t4)}")
            if xor_nh_sgpr:
                e(f"v_xor_b32 {v(t5)}, {xor_nh_sgpr}, {v(vTr_nh)}")
                e(f"v_lshl_add_u32 {v(t4)}, {v(t5)}, 5, {v(t4)}")
            else:
                e(f"v_lshl_add_u32 {v(t4)}, {v(vTr_nh)}, 5, {v(t4)}")
            e(f"v_add_u32 {v(dst)}, {v(t4)}, {v(vTr_cp)}")
        wbase(t6); aW = three('aW', t6)
        e(f"v_and_b32 {v(t4)}, 31, {v(vL)}")
        e(f"v_bfe_u32 {v(t5)}, {v(vL)}, 1, 3")
        e(f"v_xor_b32 {v(t5)}, {v(t5)}, {v(vTr_kh)}")
        e(f"v_lshlrev_b32 {v(t5)}, 4, {v(t5)}")
        e(f"v_lshl_add_u32 {v(t6)}, {v(t4)}, 7, {v(t5)}")
        aX = []
        for t in range(4):
            e(f"v_xor_b32 {v(t7)}, {32*t}, {v(t6)}")
            aX.append(three('aX', t7))
        if o['stamps']:
            self.vStamp = V.alloc(1); self.vStampA = V.alloc(1)
            e(f"s_lshl_b32 s56, s2, 2"); e("s_add_u32 s56, s56, s39"); e("s_lshl_b32 s56, s56, 7"); e(f"s_add_u32 s56, s56, {WS_DBG}")
            e(f"v_mov_b32 {v(self.vStampA)}, s56")
        self.stamp('start')

        acc = V.alloc(32, align=4)
        fA = [A.alloc(4, align=4) for _ in range(2)]
        fB = [[A.alloc(4, align=4) for _ in range(2)] for _ in range(2)]
        def gemm_reads(buf, wchunk, bchunk_fn, t, aWset):
            ops = []
            for rd in range(2):
                r, imm = self.ldsaddr(aWset, wchunk, (t >> 1) * 8192 + (4 * (t & 1) + rd) * 1024)
                ops.append(f"ds_read_b64_tr_b16 {a(fA[buf] + 2*rd, 2)}, {v(r)} offset:{imm}")
            for bt in range(2):
                r, imm = bchunk_fn(t, bt)
                ops.append(f"ds_read_b128 {a(fB[buf][bt], 4)}, {v(r)} offset:{imm}")
            return ops
        def gemm_phase(nm, wname, bname, bread, aWset, pre_barrier_hook=None):
            p.wait_tags(self.tags(wname(0), bname(0))); p.wait_lg(0); e("s_barrier")
            self.stamp(nm + '_first')
            p.many(gemm_reads(0, wname(0), bread(0), 0, aWset))
            for s in range(16):
                for t in range(4):
                    buf = t & 1
                    first = (s == 0 and t == 0)
                    fill = []
                    if t == 3:
                        p.wait_lg(0)
                        if s < 15: p.wait_tags(self.tags(wname(s+1), bname(s+1)))
                        e("s_barrier")
                        self.release(wname(s))
                        if s & 1: self.release(bname(s)[0])
                        if pre_barrier_hook: pre_barrier_hook(s)
                        if s < 15: p.many(gemm_reads(buf ^ 1, wname(s+1), bread(s+1), 0, aWset))
                        self.step_budget = o['cap']
                    else:
                        p.many(gemm_reads(buf ^ 1, wname(s), bread(s), t + 1, aWset))
                    ng = 1 if self.step_budget > 0 else 0
                    gr = self.next_granules(ng); self.step_budget -= len(gr)
                    for bt in range(2):
                        c = "0" if first else v(acc + 16*bt, 16)
                        e(f"v_mfma_f32_32x32x16_bf16 {v(acc + 16*bt, 16)}, {a(fA[buf], 4)}, {a(fB[buf][bt], 4)}, {c}")
                        if bt == 0 and gr: p.many(gr[0])
        self.step_budget = o['cap']
        def xread(s):
            def f(t, bt):
                return self.ldsaddr(aX[t], f"XX{s>>1}", (s & 1) * 8192 + bt * 4096)
            return f
        gemm_phase('p1', lambda s: f"W{s}", lambda s: (f"XX{s>>1}", s & 1), xread, aW)
        self.stamp('p1_end')
        for r in aW: V.release(r)
        for s_ in aX:
            for r in s_: V.release(r)
        V.release(self.vX, 2); V.release(self.vW, 2)
        self.phase = 2

        e(f"v_readfirstlane_b32 s52, {v(vE)}")
        e("s_mul_i32 s52, s52, 0x9E3779B1"); e("s_add_u32 s52, s52, 0x7F4A7C15")
        self.vTag = V.alloc(1); self.vPoll = V.alloc(1)
        e(f"v_mov_b32 {v(self.vTag)}, s52")
        V.release(vE)
        q = V.alloc(16, align=4)
        for k in range(16):
            e(f"v_cvt_pk_bf16_f32 {v(q+k)}, {v(acc+2*k)}, {v(acc+2*k+1)}")
        vLin2 = V.alloc(1)
        e(f"v_add_u32 {v(vLin2)}, 0x20000, {v(vLin)}")
        QQ = QQ_DG * DG
        assert self.dg9_free; self.dg9_free = False
        e(f"s_lshl_b32 s56, s2, 13"); e(f"s_add_u32 s56, s56, {WS_QD}")
        for i2 in range(2):
            e(f"buffer_store_dwordx4 {v(q+8+4*i2, 4)}, {v(vLin)}, s[32:35], s56 offen offset:{i2*1024} sc1", 'qst')
        for i2 in range(2):
            e(f"ds_write_b128 {v(vLin2)}, {v(q+4*i2, 4)} offset:{QQ - 0x20000 + i2*1024}")
        self.issue(o['n1'])
        vF = V.alloc(1); vPa = V.alloc(1)
        e(f"s_lshl_b32 s56, s2, 7"); e("s_lshl_b32 s58, s39, 2"); e("s_add_u32 s56, s56, s58"); e(f"s_add_u32 s56, s56, {WS_QF}")
        e(f"v_mov_b32 {v(vF)}, s56")
        e(f"s_xor_b32 s56, s2, 8"); e("s_lshl_b32 s56, s56, 7"); e(f"s_add_u32 s56, s56, {WS_QF}")
        e(f"v_and_b32 {v(t0)}, 3, {v(vL)}"); e(f"v_lshl_add_u32 {v(vPa)}, {v(t0)}, 2, s56")
        p.wait_tags({'qst'})
        self.flag_store(vF)
        aK = []
        e(f"v_and_b32 {v(t4)}, 31, {v(vL)}")
        e(f"v_and_b32 {v(t5)}, 15, {v(vL)}")
        e(f"v_xor_b32 {v(t5)}, {v(t5)}, {v(vTr_kh)}")
        e(f"v_lshlrev_b32 {v(t5)}, 4, {v(t5)}")
        e(f"v_lshl_add_u32 {v(t6)}, {v(t4)}, 8, {v(t5)}")
        e("s_lshl_b32 s56, s43, 13")
        e(f"v_add_u32 {v(t6)}, s56, {v(t6)}")
        for t in range(8):
            e(f"v_xor_b32 {v(t7)}, {32*t}, {v(t6)}")
            aK.append(three('aK', t7))
        aV = []
        for ai in range(4):
            e("s_lshl_b32 s56, s43, 1"); e(f"s_xor_b32 s56, s56, {ai}")
            e(f"v_xor_b32 {v(t4)}, s56, {v(vTr_r)}")
            e(f"v_lshlrev_b32 {v(t4)}, 6, {v(t4)}")
            e(f"v_lshl_add_u32 {v(t4)}, {v(vTr_r)}, 8, {v(t4)}")
            e(f"v_lshl_add_u32 {v(t4)}, {v(vTr_kh)}, 10, {v(t4)}")
            e(f"v_lshl_add_u32 {v(t4)}, {v(vTr_nh)}, 5, {v(t4)}")
            e(f"v_add_u32 {v(t4)}, {v(t4)}, {v(vTr_cp)}")
            e("s_lshl_b32 s56, s43, 13")
            e(f"v_add_u32 {v(t4)}, s56, {v(t4)}")
            aV.append(three('aV', t4))
        aQ = V.alloc(1)
        e("s_lshl_b32 s56, s42, 13"); e(f"s_add_u32 s56, s56, 0x20000")
        e(f"v_add_u32 {v(aQ)}, s56, {v(vL16)}")
        self.issue(99)
        self.stamp('q_flag')
        self.poll(vPa)
        self.stamp('q_polled')
        e(f"s_add_u32 m0, s44, {QQ + 8192}")
        e(f"s_xor_b32 s56, s2, 8"); e("s_lshl_b32 s56, s56, 13"); e(f"s_add_u32 s56, s56, {WS_QD}")
        for i2 in range(2):
            e(f"buffer_load_dwordx4 {v(vLin)}, s[32:35], s56 offen offset:{i2*1024} sc1 lds", 'qp')
        p.wait_tags({'qp'} | self.tags('K0')); p.wait_lg(0); e("s_barrier")
        V.release(q, 16); V.release(acc, 32); V.release(vLin2)
        for r in fA: A.release(r, 4)
        for x in fB:
            for r in x: A.release(r, 4)
        fQ = A.alloc(32, align=4)
        for T_ in range(8):
            e(f"ds_read_b128 {a(fQ+4*T_, 4)}, {v(aQ)} offset:{QQ - 0x20000 + T_*1024}")
        self.stamp('q_ready')

        S = V.alloc(128, align=4)
        fK = A.alloc(32, align=4)
        vM = V.alloc(1)
        DK = 4
        def kread(n):
            s, t = n >> 3, n & 7
            r, imm = self.ldsaddr(aK[t], f"K{s}", 0)
            return f"ds_read_b128 {a(fK + 4*(n & 7), 4)}, {v(r)} offset:{imm}"
        for n in range(DK): e(kread(n))
        def maxops(s, first):
            ops = []
            for k in range(8):
                x, y = S + 16*s + 2*k, S + 16*s + 2*k + 1
                if first and k == 0: ops.append(f"v_max_f32 {v(vM)}, {v(x)}, {v(y)}")
                else: ops.append(f"v_max3_f32 {v(vM)}, {v(vM)}, {v(x)}, {v(y)}")
            return ops
        fV = A.alloc(32, align=4)
        DV = 4
        def vread(n):
            s, f = n >> 3, n & 7
            u, ai = f >> 2, f & 3
            ops = []
            for rd in range(2):
                r, imm = self.ldsaddr(aV[ai], f"V{s}", (4*u + 2*rd) * 1024)
                ops.append(f"ds_read_b64_tr_b16 {a(fV + 4*f + 2*rd, 2)}, {v(r)} offset:{imm}")
            return ops
        for s in range(8):
            mx = maxops(s-1, s == 1) if s > 0 else []
            gr = self.next_granules(2)
            for t in range(8):
                n = 8*s + t
                if t == 8 - DK:
                    if s < 7: p.wait_tags(self.tags(f"K{s+1}"))
                    else: p.wait_tags(self.tags("V0"))
                    e("s_barrier")
                    if s > 0: self.release(f"K{s-1}")
                    gr += self.next_granules(o['cap'] - 2)
                c = "0" if t == 0 else v(S + 16*s, 16)
                e(f"v_mfma_f32_32x32x16_bf16 {v(S + 16*s, 16)}, {a(fK + 4*t, 4)}, {a(fQ + 4*t, 4)}, {c}")
                if n + DK < 64: e(kread(n + DK))
                elif s == 7:
                    p.many(vread(n + DK - 64))
                if t >= 2 and mx:
                    e(mx.pop(0))
                    if t >= 6 and mx: e(mx.pop(0))
                if gr and t in (1, 3, 5, 7): p.many(gr.pop(0))
            assert not mx and not gr, (mx, gr)
        self.stamp('qk_end')
        p.many(maxops(7, False))
        vM2 = V.alloc(1); vNM = V.alloc(1)
        e(f"v_mov_b32 {v(vM2)}, {v(vM)}")
        e(f"v_permlane32_swap_b32 {v(vM)}, {v(vM2)}")
        e(f"v_max_f32 {v(vM)}, {v(vM)}, {v(vM2)}")
        C = 128 ** -0.5 * math.log2(math.e)
        import struct
        cbits = struct.unpack('<I', struct.pack('<f', C))[0]
        e(f"s_mov_b32 s61, {cbits:#x}")
        e(f"v_mul_f32 {v(vM)}, s61, {v(vM)}")
        e(f"v_sub_f32 {v(vNM)}, 0, {v(vM)}")
        def smops(s):
            b = S + 16*s
            ops = []
            for u in range(2):
                for k in range(8): ops.append(f"v_fma_f32 {v(b+8*u+k)}, {v(b+8*u+k)}, s61, {v(vNM)}")
                for k in range(8): ops.append(f"v_exp_f32 {v(b+8*u+k)}, {v(b+8*u+k)}")
                for k in range(4): ops.append(f"v_cvt_pk_bf16_f32 {v(b+4*u+k)}, {v(b+8*u+2*k)}, {v(b+8*u+2*k+1)}")
            return ops
        p.many(smops(0))
        oOwn = V.alloc(32, align=4)
        oSnd = A.alloc(32, align=4)
        lAcc = A.alloc(16, align=4)
        ones = A.alloc(4, align=4)
        e(f"v_mov_b32 {v(t0)}, 0x3f803f80")
        for k in range(4): e(f"v_accvgpr_write_b32 {a(ones+k)}, {v(t0)}")
        def oacc(ai): return v(oOwn + 16*ai, 16) if ai < 2 else a(oSnd + 16*(ai-2), 16)
        self.rs = None
        for s in range(8):
            sm = smops(s+1) if s < 7 else []
            if s == 5: self.hold = 2
            gr = self.next_granules(2)
            nslot = 10; slot = 0
            for f in range(8):
                n = 8*s + f
                u, ai = f >> 2, f & 3
                if f == 8 - DV:
                    if s < 7: p.wait_tags(self.tags(f"V{s+1}"))
                    e("s_barrier")
                    if s > 0: self.release(f"V{s-1}")
                    else: self.release("K7")
                    gr += self.next_granules(o['cap'] - 2)
                P_ = v(S + 16*s + 4*u, 4)
                c = "0" if (s == 0 and u == 0) else oacc(ai)
                e(f"v_mfma_f32_32x32x16_bf16 {oacc(ai)}, {a(fV + 4*f, 4)}, {P_}, {c}")
                if n + DV < 64: p.many(vread(n + DV))
                k = (len(sm) + (nslot - slot) - 1) // (nslot - slot)
                for _ in range(min(k, len(sm))): e(sm.pop(0))
                slot += 1
                if ai == 3:
                    c = "0" if (s == 0 and u == 0) else a(lAcc, 16)
                    e(f"v_mfma_f32_32x32x16_bf16 {a(lAcc, 16)}, {a(ones, 4)}, {P_}, {c}")
                    k = (len(sm) + (nslot - slot) - 1) // (nslot - slot)
                    for _ in range(min(k, len(sm))): e(sm.pop(0))
                    slot += 1
                if gr and f in (1, 3, 5, 7): p.many(gr.pop(0))
            assert not sm and not gr
        self.stamp('pv_end')
        self.hold = 0
        assert len(self.free) >= 2, self.free
        rs = [self.free.pop(0), self.free.pop(0)]
        aRw = V.alloc(1); aRr = V.alloc(1); aSw = V.alloc(1); aSr = V.alloc(1)
        e("s_cmp_eq_u32 s42, 0")
        e(f"s_mov_b32 s58, {rs[1]*DG}")
        e(f"s_cselect_b32 s56, {rs[0]*DG}, s58")
        e("s_lshl_b32 s58, s43, 13"); e("s_add_u32 s59, s56, s58")
        e(f"v_add_u32 {v(aRw)}, s59, {v(vL16)}")
        e("s_xor_b32 s58, s58, 8192"); e("s_add_u32 s59, s56, s58")
        e(f"v_add_u32 {v(aRr)}, s59, {v(vL16)}")
        e(f"v_lshlrev_b32 {v(t0)}, 2, {v(vL)}")
        e("s_lshl_b32 s58, s39, 9"); e(f"s_add_u32 s59, s58, {QQ}")
        e(f"v_add_u32 {v(aSw)}, s59, {v(t0)}")
        e("s_xor_b32 s58, s58, 512"); e(f"s_add_u32 s59, s58, {QQ}")
        e(f"v_add_u32 {v(aSr)}, s59, {v(t0)}")
        e(f"ds_write_b32 {v(aSw)}, {v(vM)}")
        for k in range(8):
            e(f"ds_write_b128 {v(aRw)}, {a(oSnd + 4*k, 4)} offset:{k*1024}")
        e(f"ds_write_b32 {v(aSw)}, {a(lAcc)} offset:256")
        vLo = V.alloc(1)
        e(f"v_accvgpr_read_b32 {v(vLo)}, {a(lAcc)}")
        p.wait_lg(0); e("s_barrier")
        self.release("V7")
        vMp = V.alloc(1); vLp = V.alloc(1)
        e(f"ds_read_b32 {v(vMp)}, {v(aSr)}")
        e(f"ds_read_b32 {v(vLp)}, {v(aSr)} offset:256")
        oP = S
        for k in range(8):
            e(f"ds_read_b128 {v(oP + 4*k, 4)}, {v(aRr)} offset:{k*1024}")
        self.issue(2)
        vMx = V.alloc(1); vF0 = V.alloc(1); vF1 = V.alloc(1)
        e(f"v_max_f32 {v(vMx)}, {v(vM)}, {v(vMp)}")
        e(f"v_sub_f32 {v(vF0)}, {v(vM)}, {v(vMx)}")
        e(f"v_sub_f32 {v(vF1)}, {v(vMp)}, {v(vMx)}")
        e(f"v_exp_f32 {v(vF0)}, {v(vF0)}")
        e(f"v_exp_f32 {v(vF1)}, {v(vF1)}")
        e(f"v_mul_f32 {v(vLo)}, {v(vLo)}, {v(vF0)}")
        e(f"v_fma_f32 {v(vLo)}, {v(vLp)}, {v(vF1)}, {v(vLo)}")
        e(f"v_rcp_f32 {v(vLo)}, {v(vLo)}")
        e(f"v_mul_f32 {v(vF0)}, {v(vF0)}, {v(vLo)}")
        e(f"v_mul_f32 {v(vF1)}, {v(vF1)}, {v(vLo)}")
        for k in range(32): e(f"v_mul_f32 {v(oOwn+k)}, {v(oOwn+k)}, {v(vF0)}")
        for k in range(32): e(f"v_fma_f32 {v(oOwn+k)}, {v(oP+k)}, {v(vF1)}, {v(oOwn+k)}")
        ob = S + 32
        for k in range(16): e(f"v_cvt_pk_bf16_f32 {v(ob+k)}, {v(oOwn+2*k)}, {v(oOwn+2*k+1)}")
        e("s_xor_b32 s56, s37, s42"); e("s_lshl_b32 s56, s56, 1"); e("s_add_u32 s56, s56, s43")
        e("s_lshl_b32 s56, s56, 13"); e("s_lshl_b32 s58, s41, 10"); e("s_add_u32 s56, s56, s58")
        e("s_add_u32 s56, s56, 1024")
        e("s_add_u32 s58, s56, 4096")
        for T_ in range(4):
            so = 's56' if T_ < 2 else 's58'
            e(f"buffer_store_dwordx4 {v(ob+4*T_, 4)}, {v(vL16)}, s[80:83], {so} offen offset:{(T_&1)*2048} sc1", 'ost')
        p.wait_lg(0); e("s_barrier")
        self.free += rs; self.dg9_free = True; self.phase = 3
        e(f"s_lshl_b32 s56, s60, 7"); e(f"s_add_u32 s56, s56, {WS_OF}")
        e(f"v_and_b32 {v(t0)}, 31, {v(vL)}"); e(f"v_lshl_add_u32 {v(vPa)}, {v(t0)}, 2, s56")
        e("s_lshl_b32 s58, s37, 4"); e("s_add_u32 s56, s56, s58"); e("s_lshl_b32 s58, s39, 2"); e("s_add_u32 s56, s56, s58")
        e(f"v_mov_b32 {v(vF)}, s56")
        self.hold = 2
        self.issue(o['n1'])
        p.wait_tags({'ost'})
        self.flag_store(vF)
        self.issue(99)
        for s_ in aK + aV:
            for r in s_: V.release(r)
        V.release(S, 128); V.release(oOwn, 32); A.release(oSnd, 32); A.release(lAcc, 16); A.release(ones, 4)
        A.release(fQ, 32); A.release(fK, 32); A.release(fV, 32)
        e("s_and_b32 s56, s36, 1")
        wbase(t6, 's56'); aWO = three('aWO', t6)
        aL = three('aL', vL16)
        self.stamp('o_flag')
        self.poll(vPa)
        self.stamp('o_polled')
        self.hold = 0
        self.gates.discard('osync')
        self.issue(4)

        acc = V.alloc(32, align=4)
        fA[:] = [A.alloc(4, align=4) for _ in range(2)]
        fB[:] = [[A.alloc(4, align=4) for _ in range(2)] for _ in range(2)]
        self.step_budget = o['cap']
        def oread(s):
            def f(t, bt):
                return self.ldsaddr(aL, f"OO{s>>1}", (s & 1) * 8192 + (2*t + bt) * 1024)
            return f
        gemm_phase('p3', lambda s: f"WO{s}", lambda s: (f"OO{s>>1}", s & 1), oread, aWO)
        self.stamp('p3_end')
        for ps in range(1, 4):
            e(f"s_xor_b32 s56, s2, {ps}"); e("s_lshl_b32 s56, s56, 15"); e(f"s_add_u32 s56, s56, {WS_PD + (ps-1)*8192}")
            for hf in range(2):
                e(f"buffer_store_dwordx4 {v(acc + 8*ps + 4*hf, 4)}, {v(vLin)}, s[32:35], s56 offen offset:{hf*1024} sc1", 'pst')
        e(f"v_and_b32 {v(t0)}, 3, {v(vL)}")
        e(f"v_max_u32 {v(t0)}, 1, {v(t0)}")
        e(f"v_xor_b32 {v(t1)}, s2, {v(t0)}")
        e(f"v_lshlrev_b32 {v(t1)}, 7, {v(t1)}")
        e(f"v_lshl_add_u32 {v(t1)}, {v(t0)}, 4, {v(t1)}")
        e("s_lshl_b32 s58, s39, 2"); e(f"s_add_u32 s58, s58, {WS_PF}")
        e(f"v_add_u32 {v(vF)}, s58, {v(t1)}")
        e(f"s_lshl_b32 s56, s2, 7"); e("s_add_u32 s56, s56, s58")
        e(f"v_lshl_add_u32 {v(vPa)}, {v(t0)}, 4, s56")
        vOut = V.alloc(1)
        e("s_lshr_b32 s56, s36, 1"); e("s_lshl_b32 s56, s56, 5"); e("s_lshl_b32 s58, s38, 6"); e("s_add_u32 s56, s56, s58")
        e(f"v_and_b32 {v(t2)}, 31, {v(vL)}"); e(f"v_add_u32 {v(t2)}, s56, {v(t2)}"); e(f"v_lshlrev_b32 {v(t2)}, 11, {v(t2)}")
        e("s_lshl_b32 s56, s37, 7"); e("s_lshl_b32 s58, s39, 5"); e("s_add_u32 s56, s56, s58")
        e("s_and_b32 s58, s36, 1"); e("s_lshl_b32 s58, s58, 4"); e("s_add_u32 s56, s56, s58"); e("s_lshl_b32 s56, s56, 1")
        e(f"v_lshl_add_u32 {v(t2)}, {v(vTr_kh)}, 4, {v(t2)}")
        e(f"v_add_u32 {v(vOut)}, s56, {v(t2)}")
        p.wait_tags({'pst'})
        e("s_mov_b64 exec, 14")
        e(f"buffer_store_dword {v(self.vTag)}, {v(vF)}, s[32:35], 0 offen sc1")
        e("s_mov_b64 exec, -1")
        self.stamp('p_flag')
        self.poll(vPa)
        self.stamp('p_polled')
        pr = V.alloc(24, align=4)
        for ps in range(1, 4):
            e(f"s_lshl_b32 s56, s2, 15"); e(f"s_add_u32 s56, s56, {WS_PD + (ps-1)*8192}")
            for hf in range(2):
                e(f"buffer_load_dwordx4 {v(pr + 8*(ps-1) + 4*hf, 4)}, {v(vLin)}, s[32:35], s56 offen offset:{hf*1024} sc1")
        for ps in range(3):
            for k in range(8): e(f"v_add_f32 {v(acc+k)}, {v(acc+k)}, {v(pr + 8*ps + k)}")
        for k in range(4): e(f"v_cvt_pk_bf16_f32 {v(pr+k)}, {v(acc+2*k)}, {v(acc+2*k+1)}")
        e(f"buffer_store_dwordx4 {v(pr, 4)}, {v(vOut)}, s[28:31], 0 offen")
        e("s_and_b32 s56, s2, 0x3b")
        e("s_or_b32 s56, s56, s39")
        p.raw("s_cmp_lg_u32 s56, 0")
        p.raw("s_cbranch_scc1 L_fin")
        e(f"s_lshl_b32 s56, s38, 8")
        e(f"v_mov_b32 {v(t0)}, s56")
        self.flag_store(t0)
        p.label("L_fin")
        self.stamp('end')
        p.raw("s_waitcnt vmcnt(0)")
        if o['probe']:
            p.raw("s_sub_u32 s86, s88, s86")
            p.raw(f"s_mul_i32 s86, s86, {o['probe'][2]}")
            p.raw("s_memrealtime s[88:89]"); p.raw("s_waitcnt lgkmcnt(0)")
            p.raw("s_add_u32 s86, s86, s88")
            p.label("L_probe")
            p.raw("s_memrealtime s[88:89]"); p.raw("s_waitcnt lgkmcnt(0)")
            p.raw("s_sub_u32 s90, s88, s86")
            p.raw("s_cmp_lt_i32 s90, 0")
            p.raw("s_cbranch_scc1 L_probe")
        p.label("L_exit")
        p.raw("s_endpgm")
        assert self.si == len(self.stream), (self.si, len(self.stream))
        p.finalize()
        return self.text()

    def text(self):
        nv = 256; na = self.A.hi
        na = max(na, 4)
        total = nv + ((na + 7) // 8) * 8
        hdr = f"""; GQA block (Q projection, cached attention, output projection) as one persistent launch.
; @launch grid=(256,1,1) block=(256,1,1) lds=163840
.amdgcn_target "amdgcn-amd-amdhsa--gfx950"
.text
.globl {NAME}
.p2align 8
.type {NAME},@function
{NAME}:
"""
        ftr = f"""
.section .rodata,"a"
.p2align 6
.amdhsa_kernel {NAME}
  .amdhsa_next_free_vgpr 512
  .amdhsa_next_free_sgpr 96
  .amdhsa_accum_offset 256
  .amdhsa_group_segment_fixed_size 0
  .amdhsa_kernarg_size 64
  .amdhsa_user_sgpr_count 2
  .amdhsa_user_sgpr_kernarg_segment_ptr 1
  .amdhsa_system_sgpr_workgroup_id_x 1
.end_amdhsa_kernel
"""
        return hdr + self.p.text() + ftr

if __name__ == "__main__":
    import json
    out = sys.argv[1] if len(sys.argv) > 1 else "standalone__gqa_block_cached__near_ridge.s"
    kw = json.loads(sys.argv[2]) if len(sys.argv) > 2 else {}
    g = Gen(**kw)
    txt = g.build()
    open(out, "w").write(txt)
    if g.o['stamps']: json.dump(g.stamp_names, open(out[:-2] + ".stamps.json", "w"))
    print("written", out, "instr counts", g.p.count(), "nops", g.p.stats, "V hi", g.V.hi, "A hi", g.A.hi, "stamps", g.stamp_names)
```

```python
import re

REG_RE = re.compile(r'^([vas])(\d+)$|^([vas])\[(\d+):(\d+)\]$')

def regs_of(op):
    op = op.strip()
    if op.startswith('-'): op = op[1:]
    if op.startswith('abs(') or op.startswith('|'):
        op = op.replace('abs(', '').replace(')', '').replace('|', '')
    if op == 'vcc': return [('s', 'vcc')]
    if op in ('exec', 'exec_lo', 'exec_hi'): return [('s', 'exec')]
    if op == 'm0': return [('s', 'm0')]
    m = REG_RE.match(op)
    if not m: return []
    if m.group(1): return [(m.group(1), int(m.group(2)))]
    return [(m.group(3), r) for r in range(int(m.group(4)), int(m.group(5)) + 1)]

TRANS = ('v_exp_f32', 'v_log_f32', 'v_rcp_f32', 'v_rsq_f32', 'v_sqrt_f32', 'v_sin_f32', 'v_cos_f32')

class I:
    __slots__ = ('text', 'op', 'kind', 'reads', 'writes', 'srcc', 'ab', 'tag', 'size')
    def __init__(self, text, tag=None):
        self.text = text; self.tag = tag
        t = text.split(';')[0].strip()
        self.reads = []; self.writes = []; self.srcc = []; self.ab = []
        if t.endswith(':') or t.startswith('.') or not t:
            self.op = t; self.kind = 'label'; return
        parts = t.split(None, 1)
        self.op = op = parts[0]
        ops = []
        if len(parts) > 1:
            ops = [o.strip() for o in parts[1].split(',')]
            last = ops[-1].split()
            mods = last[1:] if last else []
            if last: ops[-1] = last[0]
        else:
            mods = []
        R = lambda o: regs_of(o)
        if op.startswith('v_mfma'):
            self.kind = 'mfma'
            self.writes = R(ops[0]); self.ab = R(ops[1]) + R(ops[2]); self.srcc = R(ops[3])
            self.reads = self.ab + self.srcc
        elif op.startswith('ds_read'):
            self.kind = 'dsr'; self.writes = R(ops[0]); self.reads = R(ops[1])
        elif op.startswith('ds_write'):
            self.kind = 'dsw'; self.reads = sum((R(o) for o in ops), [])
        elif op.startswith('buffer_load') or op.startswith('global_load'):
            allt = t.split()
            if 'lds' in allt:
                self.kind = 'dma'; self.reads = sum((R(o) for o in ops), []) + [('s', 'm0')]
            else:
                self.kind = 'vload'; self.writes = R(ops[0]); self.reads = sum((R(o) for o in ops[1:]), [])
        elif op.startswith('buffer_store') or op.startswith('global_store'):
            self.kind = 'vstore'; self.reads = sum((R(o) for o in ops), [])
        elif op.startswith('s_waitcnt'):
            self.kind = 'wait'
        elif op == 's_barrier': self.kind = 'barrier'
        elif op == 's_nop': self.kind = 'nop'
        elif op.startswith('s_cbranch') or op == 's_branch' or op == 's_endpgm':
            self.kind = 'branch'
        elif op.startswith('s_load') or op.startswith('s_mem'):
            self.kind = 'smem'; self.writes = R(ops[0]); self.reads = sum((R(o) for o in ops[1:]), [])
        elif op.startswith('s_cmp') or op.startswith('s_bitcmp'):
            self.kind = 'salu'; self.reads = sum((R(o) for o in ops), [])
        elif op.startswith('s_'):
            self.kind = 'salu'; self.writes = R(ops[0]); self.reads = sum((R(o) for o in ops[1:]), [])
        elif op.startswith('v_permlane'):
            self.kind = 'valu'; self.writes = R(ops[0]) + R(ops[1]); self.reads = list(self.writes)
        elif op.startswith('v_cmp'):
            self.kind = 'valu'; self.writes = R(ops[0]); self.reads = sum((R(o) for o in ops[1:]), [])
        elif op.startswith('v_'):
            self.kind = 'valu'; self.writes = R(ops[0]); self.reads = sum((R(o) for o in ops[1:]), [])
            if op.startswith('v_fmac') or op.startswith('v_mac'): self.reads += self.writes
            if op.startswith('v_cndmask') and len(ops) == 3: self.reads.append(('s', 'vcc'))
        else:
            raise ValueError("unknown instr: " + text)

class Prog:
    def __init__(self):
        self.ins = []
        self.lg = []
        self.vm = []
        self.auto = True
        self.stats = {}
    def raw(self, text, tag=None):
        i = I(text, tag); self.ins.append(i); return i
    def comment(self, text):
        self.ins.append(I("; " + text) if False else _Comment(text))
    def label(self, name):
        self.ins.append(I(name + ":"))
    def _wait_lg(self, n):
        if n < len(self.lg):
            assert n <= 15
            self.raw(f"s_waitcnt lgkmcnt({n})"); self.lg = self.lg[len(self.lg) - n:] if n else []
    def _wait_vm(self, n):
        if n < len(self.vm):
            assert n <= 63, n
            self.raw(f"s_waitcnt vmcnt({n})"); self.vm = self.vm[len(self.vm) - n:] if n else []
    def wait_lg(self, n=0): self._wait_lg(n)
    def wait_vm(self, n=0): self._wait_vm(n)
    def wait_tags(self, tags):
        last = -1
        for k, o in enumerate(self.vm):
            if o['tag'] in tags: last = k
        if last >= 0: self._wait_vm(len(self.vm) - 1 - last)
    def e(self, text, tag=None):
        i = I(text, tag)
        touched = set(i.reads) | set(i.writes)
        last = -1
        for k, regs in enumerate(self.lg):
            if regs & touched: last = k
        if last >= 0: self._wait_lg(len(self.lg) - 1 - last)
        last = -1
        for k, o in enumerate(self.vm):
            if o['regs'] & touched: last = k
        if last >= 0: self._wait_vm(len(self.vm) - 1 - last)
        if i.kind in ('dsr', 'dsw'):
            if len(self.lg) >= 15: self._wait_lg(14)
            self.lg.append(set(i.writes))
        if i.kind in ('dma', 'vload', 'vstore'):
            if len(self.vm) >= 63: self._wait_vm(62)
            self.vm.append(dict(regs=set(i.writes), tag=tag))
        self.ins.append(i)
        return i
    def many(self, lst):
        for x in lst:
            if isinstance(x, tuple): self.e(*x)
            else: self.e(x)
    def forget(self):
        self.vm = []
    def finalize(self):
        out = []
        hist = []
        def states_since(pred):
            n = 0
            for h in reversed(hist):
                if pred(h): return n
                n += (int(h.text.split()[1]) + 1) if h.kind == 'nop' else 1
                if n > 24: return None
            return None
        nnop = 0
        for i in self.ins:
            if isinstance(i, _Comment) or i.kind == 'label':
                out.append(i); continue
            need = 0
            rd = set(i.reads); wr = set(i.writes)
            vr = {r for r in rd if r[0] in 'va'}; vw = {r for r in wr if r[0] in 'va'}
            sr = {r for r in rd if r[0] == 's'}
            def req(pred, n):
                nonlocal need
                s = states_since(pred)
                if s is not None and s < n: need = max(need, n - s)
            isvalu = lambda h: h.kind == 'valu'
            if i.kind == 'mfma':
                req(lambda h: isvalu(h) and set(h.writes) & vr, 2)
                ab = set(i.ab); c = set(i.srcc)
                req(lambda h: h.kind == 'mfma' and set(h.writes) & ab, 12)
                req(lambda h: h.kind == 'mfma' and (set(h.writes) & c) and set(h.writes) != c, 10)
                req(lambda h: h.kind == 'mfma' and (set(h.writes) & vw) and set(h.writes) != c, 10)
                req(lambda h: isvalu(h) and ('s', 'exec') in h.writes, 4)
            if i.kind in ('valu', 'dsw', 'vstore', 'dsr', 'vload', 'dma'):
                req(lambda h: h.kind == 'mfma' and set(h.writes) & (vr | vw), 12)
            if i.kind == 'valu':
                req(lambda h: h.kind == 'mfma' and set(h.srcc) & vw, 7)
                req(lambda h: isvalu(h) and h.op.startswith(TRANS) and set(h.writes) & vr, 1) if not i.op.startswith(TRANS) else None
                req(lambda h: isvalu(h) and set(h.writes) & sr, 2)
                req(lambda h: h.kind == 'vstore' and ('x4' in h.op or 'x3' in h.op) and set(h.reads) & vw, 2)
                if i.op.startswith('v_permlane'):
                    req(lambda h: isvalu(h) and set(h.writes) & vr, 2)
                if i.op.startswith('v_readfirstlane') or i.op.startswith('v_readlane'):
                    req(lambda h: isvalu(h) and set(h.writes) & vr, 1)
                if 'dpp' in i.text or 'row_' in i.text:
                    req(lambda h: isvalu(h) and set(h.writes) & vr, 2)
            if i.kind in ('dsr', 'vload'):
                req(lambda h: h.kind == 'vstore' and ('x4' in h.op or 'x3' in h.op) and set(h.reads) & vw, 2)
            if i.kind in ('dma', 'vload', 'vstore'):
                req(lambda h: isvalu(h) and set(h.writes) & sr, 5)
            if i.kind == 'dma':
                req(lambda h: h.kind == 'salu' and ('s', 'm0') in h.writes, 1)
            if i.kind in ('salu', 'smem', 'branch'):
                req(lambda h: isvalu(h) and set(h.writes) & sr, 4)
                if i.kind == 'branch' and 'vcc' in i.op:
                    req(lambda h: isvalu(h) and ('s', 'vcc') in h.writes, 5)
            while need > 0:
                k = min(need, 16)
                n = I(f"s_nop {k-1}"); out.append(n); hist.append(n); need -= k; nnop += 1
            out.append(i); hist.append(i)
            if len(hist) > 64: hist = hist[-40:]
        self.stats['nops'] = nnop
        self.final = out
        return out
    def text(self):
        L = []
        for i in self.final:
            if isinstance(i, _Comment): L.append("; " + i.text)
            elif i.kind == 'label': L.append(i.text)
            else: L.append("    " + i.text)
        return "\n".join(L)
    def count(self):
        c = {}
        for i in self.final:
            if isinstance(i, _Comment) or i.kind == 'label': continue
            c[i.kind] = c.get(i.kind, 0) + 1
        return c

class _Comment:
    kind = 'comment'
    def __init__(self, t): self.text = t

class RegAlloc:
    def __init__(self, prefix, lo, hi):
        self.p = prefix; self.free = set(range(lo, hi)); self.hi = lo; self.names = {}
    def alloc(self, n=1, align=1, name=None):
        for s in sorted(self.free):
            if s % align: continue
            if all((s + k) in self.free for k in range(n)):
                for k in range(n): self.free.discard(s + k)
                self.hi = max(self.hi, s + n)
                if name: self.names[name] = (s, n)
                return s
        raise RuntimeError(f"out of {self.p} regs for {name} n={n}")
    def at(self, s, n):
        for k in range(n):
            assert (s + k) in self.free, (self.p, s + k)
            self.free.discard(s + k)
        self.hi = max(self.hi, s + n)
        return s
    def release(self, s, n=1):
        for k in range(n):
            assert (s + k) not in self.free
            self.free.add(s + k)
    def r(self, s, n=1):
        return f"{self.p}{s}" if n == 1 else f"{self.p}[{s}:{s+n-1}]"
```

```python
import sys, math
sys.path.insert(0, 'tools')
from asmlib import Prog, RegAlloc

NAME = "standalone__gqa_block_cached__near_ridge_kernel"

WS_E   = 0x0
WS_QF  = 0x10000
WS_OF  = 0x20000
WS_PF  = 0x30000
WS_DBG = 0x40000
WS_QD  = 0x100000
WS_OD  = 0x400000
WS_PD  = 0x800000
WS_SIZE = 0x1000000
DG = 16384
NDG = 10
QQ_DG = 9

DEFAULTS = dict(
    cap=4,
    pro=6,
    spin=200000,
    stagger=True,
    nt_w='', nt_kv='', nt_x='',
    prefetch_code=True,
    stamps=False,
    stop_after=None,
    cap2=4, hold_at=5,
    k_early=2, wo_pv=1, n2=0, n2b=8, n3=4, n4=0, oall_at=0,
    n1=4,
    bwtest=None,
    probe=None,
)

class Gen:
    def __init__(self, **kw):
        self.o = dict(DEFAULTS); self.o.update(kw)
        self.p = Prog()
        self.V = RegAlloc('v', 0, 254)
        self.A = RegAlloc('a', 0, 256)
        self.nlabel = 0
        self.stamp_i = 0

    def e(self, t, tag=None): return self.p.e(t, tag)
    def v(self, r, n=1): return self.V.r(r, n)
    def a(self, r, n=1): return self.A.r(r, n)
    def lab(self, s):
        self.nlabel += 1; return f"L_{s}_{self.nlabel}"
    def stamp(self, name):
        pr = self.o['probe']
        if pr and name in pr[:2]:
            r = 86 if name == pr[0] else 88
            self.p.wait_lg(0)
            self.e(f"s_memrealtime s[{r}:{r+1}]")
            self.p.raw("s_waitcnt lgkmcnt(0)")
        if not self.o['stamps']: return
        k = self.stamp_i; self.stamp_i += 1
        assert k < 64
        self.stamp_names.append(name)
        p = self.p
        p.wait_lg(0)
        self.e("s_memrealtime s[84:85]")
        self.e("s_memtime s[90:91]")
        p.raw("s_waitcnt lgkmcnt(0)")
        p.raw(f"v_writelane_b32 v255, s84, {k}")
        p.raw(f"v_writelane_b32 v254, s90, {k}")

    def init_alloc(self):
        self.free = list(range(NDG - 1))
        self.dg9_free = True
        self.chunks = {}
        self.stream = []
        self.si = 0
        self.pq = []
    def build_stream(self):
        S = []
        def g(chunk, gi, kind, **kw): S.append(dict(chunk=chunk, gi=gi, kind=kind, **kw))
        for m in range(8):
            g(f"XX{m}", 0, 'X', stage=2*m)
            g(f"W{2*m}", 0, 'W'); g(f"W{2*m}", 1, 'W')
            g(f"XX{m}", 1, 'X', stage=2*m+1)
            g(f"W{2*m+1}", 0, 'W'); g(f"W{2*m+1}", 1, 'W')
        for s in range(8):
            gt = None if s < self.o['k_early'] else 'kq'
            g(f"K{s}", 0, 'K', gate=gt); g(f"K{s}", 1, 'K', gate=gt)
        for s in range(8):
            g(f"V{s}", 0, 'V', gate='v'); g(f"V{s}", 1, 'V', gate='v')
        order = [('WO', s) for s in range(7)] + [('OO', 0), ('OO', 1), ('WO', 7)]
        nxt = 8
        for m in range(2, 8):
            order.append(('OO', m))
            for _ in range(2):
                if nxt < 16: order.append(('WO', nxt)); nxt += 1
        while nxt < 16: order.append(('WO', nxt)); nxt += 1
        for kind, s in order:
            if kind == 'WO':
                g(f"WO{s}", 0, 'WO', gate='wo'); g(f"WO{s}", 1, 'WO', gate='wo')
            else:
                gt = 'opair' if s < 2 else 'oall'
                g(f"OO{s}", 0, 'O', gate=gt); g(f"OO{s}", 1, 'O', gate=gt)
        self.stream = S
        self.gates = set(['kq', 'v', 'wo', 'opair', 'oall'])
        self.hold = 0
    def alloc_dg(self, chunk):
        if chunk in self.chunks: return self.chunks[chunk]
        allow9 = self.dg9_free and self.dg9_ok(chunk)
        avail = len(self.free) + (1 if allow9 else 0)
        if len(self.free) - self.hold <= 0 and not allow9: return None
        if allow9:
            d = QQ_DG; self.dg9_free = False
        else:
            d = self.free.pop(0)
        self.chunks[chunk] = d
        return d
    def dg9_ok(self, chunk):
        if self.phase == 1:
            if chunk.startswith('W') and not chunk.startswith('WO'): return int(chunk[1:]) <= 12
            if chunk.startswith('XX'): return int(chunk[2:]) <= 5
            return False
        if self.phase == 3: return True
        return False
    def release(self, chunk):
        d = self.chunks[chunk]
        if d == QQ_DG: self.dg9_free = True
        else: self.free.append(d)
    def next_granules(self, n):
        out = []
        while n > 0 and self.si < len(self.stream):
            gd = self.stream[self.si]
            if gd.get('gate') in self.gates: break
            d = self.alloc_dg(gd['chunk'])
            if d is None: break
            out.append(self.granule_ops(gd, d))
            if self.o.get('log'): print(f"  mfma#{sum(1 for i_ in self.p.ins if i_.kind == 'mfma')}: {gd['chunk']}.{gd['gi']} -> DG{d}")
            self.si += 1; n -= 1
        return out
    def granule_ops(self, gd, d):
        k = gd['kind']; lds = d * DG + gd['gi'] * 8192
        tag = (gd['chunk'], gd['gi'])
        ops = [f"s_add_u32 m0, s44, {lds}"]
        V = self.v
        if k == 'X':
            ops += ["s_add_u32 s45, s45, 128", "s_and_b32 s45, s45, 2047"]
            f = self.o['nt_x']
            ops += [(f"buffer_load_dwordx4 {V(self.vX)}, s[8:11], s45 offen {f} lds", tag),
                    (f"buffer_load_dwordx4 {V(self.vX+1)}, s[8:11], s45 offen offset:1024 {f} lds", tag)]
        elif k == 'W':
            ops += ["s_add_u32 s46, s46, 262144", "s_and_b32 s46, s46, 0x7fffff"]
            f = self.o['nt_w']
            ops += [(f"buffer_load_dwordx4 {V(self.vW)}, s[20:23], s46 offen {f} lds", tag),
                    (f"buffer_load_dwordx4 {V(self.vW+1)}, s[20:23], s46 offen offset:1024 {f} lds", tag)]
        elif k in 'KV':
            cur = 's47' if k == 'K' else 's48'
            srd = 's[12:15]' if k == 'K' else 's[16:19]'
            r0, r1 = (self.vK, self.vK+1) if k == 'K' else (self.vV, self.vV)
            f = self.o['nt_kv']
            if gd['gi'] == 0:
                ops += [f"s_add_u32 {cur}, {cur}, 8192", f"s_and_b32 {cur}, {cur}, 0xffff"]
                so = cur
            else:
                ops += [f"s_add_u32 s51, {cur}, 65536"]
                so = 's51'
            ops += [(f"buffer_load_dwordx4 {V(r0)}, {srd}, {so} offen {f} lds", tag),
                    (f"buffer_load_dwordx4 {V(r1)}, {srd}, {so} offen offset:1024 {f} lds", tag)]
        elif k == 'WO':
            ops += ["s_add_u32 s49, s49, 65536", "s_and_b32 s49, s49, 0x1fffff"]
            f = self.o['nt_w']
            ops += [(f"buffer_load_dwordx4 {V(self.vWO)}, s[24:27], s49 offen {f} lds", tag),
                    (f"buffer_load_dwordx4 {V(self.vWO+1)}, s[24:27], s49 offen offset:1024 {f} lds", tag)]
        elif k == 'O':
            ops += ["s_add_u32 s50, s50, 8192", "s_and_b32 s50, s50, 0x1ffff"]
            ops += [(f"buffer_load_dwordx4 {V(self.vO)}, s[80:83], s50 offen sc1 lds", tag),
                    (f"buffer_load_dwordx4 {V(self.vO+1)}, s[80:83], s50 offen offset:1024 sc1 lds", tag)]
        if self.o.get('nodma') or k in self.o.get('skip', []): ops = [x for x in ops if not isinstance(x, tuple)]
        return ops
    def issue(self, n):
        self.flush_pieces()
        for ops in self.next_granules(n): self.p.many(ops)
    def queue(self, n):
        for ops in self.next_granules(n):
            tl = [i for i, x in enumerate(ops) if isinstance(x, tuple)]
            k = tl[0] if tl else len(ops) - 1
            self.pq.append(ops[:k+1]); self.pq.append(ops[k+1:])
    def piece(self, n=1):
        for _ in range(n):
            if self.pq: self.p.many(self.pq.pop(0))
    def flush_pieces(self):
        while self.pq: self.piece()
    def need(self, tags):
        while any(isinstance(x, tuple) and x[1] in tags for pc in self.pq for x in pc): self.piece()
        self.p.wait_tags(tags)
    def tags(self, *chunks):
        t = set()
        for c in chunks:
            if isinstance(c, tuple): t.add(c)
            else: t.add((c, 0)); t.add((c, 1))
        return t
    def ldsaddr(self, base_regs, chunk_or_abs, inner):
        a = (self.chunks[chunk_or_abs] * DG if isinstance(chunk_or_abs, str) else chunk_or_abs) + inner
        st = a // 65536
        return base_regs[st], a - st * 65536

    @staticmethod
    def spread(slots, fillers):
        flat = []
        for f in fillers: flat.append(f)
        n = len(slots)
        res = [[] for _ in range(n)]
        for k, f in enumerate(flat):
            res[min(n - 1, (k * n) // max(1, len(flat)))].append(f)
        return res

    def poll(self, vaddr):
        p = self.p
        L = self.lab("poll"); D = self.lab("pdone")
        self.e(f"s_mov_b32 s54, {self.o['spin']}")
        p.label(L)
        p.raw(f"buffer_load_dword {self.v(self.vPoll)}, {self.v(vaddr)}, s[32:35], 0 offen sc1")
        p.raw("s_waitcnt vmcnt(0)")
        p.forget()
        p.raw(f"v_cmp_ne_u32 vcc, s52, {self.v(self.vPoll)}")
        p.raw(f"s_cbranch_vccz {D}")
        p.raw("s_sub_u32 s54, s54, 1")
        p.raw(f"s_cbranch_scc0 {L}")
        p.label(D)
    def wg_flag(self, vaddr):
        p = self.p
        self.e("s_barrier")
        L = self.lab("noflag")
        p.raw("s_cmp_lg_u32 s39, 0")
        p.raw(f"s_cbranch_scc1 {L}")
        p.raw("s_mov_b64 exec, 1")
        p.raw(f"buffer_store_dword {self.v(self.vTag)}, {self.v(vaddr)}, s[32:35], 0 offen sc1")
        p.raw("s_mov_b64 exec, -1")
        p.label(L)
    def flag_store(self, vaddr):
        self.e("s_mov_b64 exec, 1")
        self.e(f"buffer_store_dword {self.v(self.vTag)}, {self.v(vaddr)}, s[32:35], 0 offen sc1")
        self.e("s_mov_b64 exec, -1")

    def build(self):
        o = self.o; p = self.p; V = self.V; A = self.A; v = self.v; a = self.a; e = self.e
        self.stamp_names = []
        self.init_alloc(); self.build_stream(); self.phase = 1
        V.alloc(1, name='v0')
        p.raw("s_cmp_ge_u32 s2, 256")
        p.raw("s_cbranch_scc1 L_exit")
        if o['probe'] and 'entry' in o['probe'][:2]:
            p.raw("s_memrealtime s[86:87]"); p.raw("s_waitcnt lgkmcnt(0)")
        self.stamp('entry')
        p.raw("s_load_dwordx16 s[64:79], s[0:1], 0")
        T = [V.alloc(1) for _ in range(8)]
        t0, t1, t2, t3, t4, t5, t6, t7 = T
        vL = V.alloc(1, name='lane')
        e(f"v_and_b32 {v(vL)}, 63, v0")
        e(f"v_lshrrev_b32 {v(t0)}, 6, v0")
        e(f"v_readfirstlane_b32 s39, {v(t0)}")
        e("s_and_b32 s36, s2, 3")
        e("s_lshr_b32 s37, s2, 3")
        e("s_and_b32 s37, s37, 7")
        e("s_lshr_b32 s51, s2, 6")
        e("s_bfe_u32 s53, s2, 0x10002")
        e("s_lshl_b32 s38, s53, 2")
        e("s_add_u32 s38, s38, s51")
        e("s_lshr_b32 s40, s37, 1")
        e("s_and_b32 s41, s37, 1")
        e("s_lshr_b32 s42, s39, 1")
        e("s_and_b32 s43, s39, 1")
        e("s_lshl_b32 s44, s39, 11")
        if o['stagger']:
            e("s_lshl_b32 s55, s51, 2"); e("s_lshl_b32 s56, s37, 1"); e("s_add_u32 s55, s55, s56"); e("s_and_b32 s55, s55, 15")
            e("s_lshl_b32 s57, s40, 1")
        else:
            e("s_mov_b32 s55, 0"); e("s_mov_b32 s57, 0")
        e("s_lshl_b32 s45, s55, 7"); e("s_sub_u32 s45, s45, 128"); e("s_and_b32 s45, s45, 2047")
        e("s_lshl_b32 s46, s55, 19"); e("s_sub_u32 s46, s46, 262144"); e("s_and_b32 s46, s46, 0x7fffff")
        e("s_lshl_b32 s47, s57, 13"); e("s_sub_u32 s47, s47, 8192"); e("s_and_b32 s47, s47, 0xffff")
        e("s_mov_b32 s48, s47")
        e("s_lshl_b32 s56, s40, 2")
        e("s_lshl_b32 s49, s56, 17"); e("s_sub_u32 s49, s49, 65536"); e("s_and_b32 s49, s49, 0x1fffff")
        e("s_lshl_b32 s50, s56, 13"); e("s_sub_u32 s50, s50, 8192"); e("s_and_b32 s50, s50, 0x1ffff")
        e("s_lshl_b32 s56, s51, 1"); e("s_add_u32 s56, s56, s37"); e("s_and_b32 s53, s56, 7")

        self.vX = V.alloc(2); self.vW = V.alloc(2); self.vWO = V.alloc(2); self.vK = V.alloc(2); self.vV = V.alloc(1)
        self.vO = V.alloc(2); vLin = V.alloc(1); vL16 = V.alloc(1)
        e(f"v_lshlrev_b32 {v(vL16)}, 4, {v(vL)}")
        e(f"v_add_u32 {v(vLin)}, s44, {v(vL16)}")
        e(f"v_lshrrev_b32 {v(t0)}, 4, {v(vL)}")
        e(f"v_bfe_u32 {v(t1)}, {v(vL)}, 2, 2")
        e(f"v_xor_b32 {v(t1)}, {v(t1)}, {v(t0)}")
        e(f"v_lshlrev_b32 {v(t1)}, 6, {v(t1)}")
        e(f"v_and_b32 {v(t2)}, 3, {v(vL)}")
        e(f"v_lshl_add_u32 {v(t1)}, {v(t2)}, 4, {v(t1)}")
        e("s_lshl_b32 s56, s39, 3")
        e(f"v_add_u32 {v(t2)}, s56, {v(t0)}")
        e(f"v_lshl_add_u32 {v(self.vW)}, {v(t2)}, 13, {v(t1)}")
        e(f"v_add_u32 {v(self.vW+1)}, {4*8192-1024}, {v(self.vW)}")
        e(f"v_lshl_add_u32 {v(self.vWO)}, {v(t2)}, 11, {v(t1)}")
        e(f"v_add_u32 {v(self.vWO+1)}, {4*2048-1024}, {v(self.vWO)}")
        e(f"v_lshl_add_u32 {v(self.vV)}, {v(t2)}, 8, {v(t1)}")
        e(f"v_and_b32 {v(t3)}, 15, {v(vL)}")
        e("s_lshl_b32 s56, s43, 3")
        e(f"v_add_u32 {v(t4)}, s56, {v(t0)}")
        e(f"v_xor_b32 {v(t4)}, {v(t4)}, {v(t3)}")
        e(f"v_lshlrev_b32 {v(t5)}, 8, {v(t2)}")
        e(f"v_lshl_add_u32 {v(self.vK)}, {v(t4)}, 4, {v(t5)}")
        e(f"v_xor_b32 {v(self.vK+1)}, 64, {v(self.vK)}")
        e(f"v_lshrrev_b32 {v(t0)}, 3, {v(vL)}")
        e(f"v_and_b32 {v(t1)}, 7, {v(vL)}")
        e(f"v_lshrrev_b32 {v(t2)}, 1, {v(t0)}")
        e(f"v_xor_b32 {v(t1)}, {v(t1)}, {v(t2)}")
        e("s_lshl_b32 s56, s39, 4")
        e(f"v_add_u32 {v(t3)}, s56, {v(t0)}")
        e("s_lshl_b32 s56, s41, 5")
        e(f"v_xor_b32 {v(t3)}, s56, {v(t3)}")
        e(f"v_lshlrev_b32 {v(t3)}, 11, {v(t3)}")
        e(f"v_lshl_add_u32 {v(self.vX)}, {v(t1)}, 4, {v(t3)}")
        e(f"v_xor_b32 {v(self.vX+1)}, 64, {v(self.vX)}")
        e(f"v_add_u32 {v(self.vX+1)}, {8*2048-1024}, {v(self.vX+1)}")
        p.raw("s_waitcnt lgkmcnt(0)")
        self.stamp('kernarg')
        def srd(d, ptr, off_expr_ops, size):
            for x in off_expr_ops: e(x)
            e(f"s_add_u32 s{d}, s{ptr}, s56"); e(f"s_addc_u32 s{d+1}, s{ptr+1}, 0")
            e(f"s_mov_b32 s{d+3}, 0x00020000")
            if isinstance(size, int): e(f"s_mov_b32 s{d+2}, {size}")
            else: e(size.replace('D2', f"s{d+2}"))
        if o['bwtest'] is not None:
            kb = o.get('bwkb', 32)
            e("s_mov_b32 s8, s68"); e("s_mov_b32 s9, s69"); e("s_mov_b32 s10, 0x800000"); e("s_mov_b32 s11, 0x20000")
            e(f"s_mul_i32 s56, s2, {kb*1024}")
            self.stamp('bw0')
            for k in range(kb // 4):
                e(f"s_add_u32 m0, s44, {(k % 16) * 8192}")
                e(f"s_add_u32 s58, s56, {k*4096}")
                e(f"buffer_load_dwordx4 {v(vLin)}, s[8:11], s58 offen {o['bwtest']} lds") if False else None
                e(f"v_add_u32 {v(t0)}, s58, {v(vL16)}")
                e(f"s_lshl_b32 s59, s39, 10")
                e(f"buffer_load_dwordx4 {v(t0)}, s[8:11], s59 offen {o['bwtest']} lds")
            p.wait_vm(0)
            e("s_barrier")
            self.stamp('bw1')
        srd(8, 64, ["s_lshl_b32 s56, s38, 17"], 131072)
        srd(20, 70, ["s_lshl_b32 s58, s36, 3", "s_add_u32 s58, s58, s37", "s_lshl_b32 s56, s58, 8"], "s_sub_u32 D2, 0x800000, s56")
        self.issue(o['pro'])
        self.stamp('dma0')
        srd(12, 66, ["s_lshl_b32 s59, s38, 1", "s_add_u32 s59, s59, s41", "s_lshl_b32 s59, s59, 2", "s_add_u32 s59, s59, s36", "s_lshl_b32 s56, s59, 17"], 131072)
        srd(16, 68, [], 131072)
        srd(24, 72, ["s_lshl_b32 s56, s36, 21", "s_lshl_b32 s58, s53, 8", "s_add_u32 s56, s56, s58"], "s_sub_u32 D2, 0x800000, s56")
        srd(28, 74, ["s_mov_b32 s56, 0"], 0x100000)
        srd(32, 78, [], WS_SIZE)
        srd(80, 78, ["s_and_b32 s60, s2, 7", "s_lshr_b32 s58, s2, 6", "s_lshl_b32 s58, s58, 3", "s_add_u32 s60, s60, s58",
                     "s_lshl_b32 s56, s60, 17", f"s_add_u32 s56, s56, {WS_OD - 1024}"], 131072 + 1024)
        vE = V.alloc(1)
        e(f"s_lshl_b32 s56, s38, 8")
        e(f"v_mov_b32 {v(t0)}, s56")
        e(f"buffer_load_dword {v(vE)}, {v(t0)}, s[32:35], 0 offen sc1")
        if o['prefetch_code']:
            p.raw("s_getpc_b64 s[62:63]")
            p.label("L_pc")
            e(f"s_lshr_b32 s56, s2, 3"); e("s_and_b32 s56, s56, 3"); e("s_lshl_b32 s56, s56, 13")
            e(f"v_lshlrev_b32 {v(t1)}, 7, {v(vL)}")
            e(f"v_add_u32 {v(t1)}, s56, {v(t1)}")
            e(f"v_min_u32 {v(t1)}, L_exit-L_pc, {v(t1)}")
            e(f"v_and_b32 {v(t1)}, 0xfffffffc, {v(t1)}")
            e(f"global_load_dword {v(t2)}, {v(t1)}, s[62:63]")
        e("s_lshr_b32 s56, s36, 1"); e("s_lshl_b32 s56, s56, 10")
        e(f"v_add_u32 {v(t3)}, 1024, {v(vLin)}")
        e(f"v_add_u32 {v(self.vO)}, s56, {v(t3)}")
        e(f"v_subrev_u32 {v(self.vO+1)}, s56, {v(t3)}")
        def three(name, expr_reg):
            r = V.alloc(3)
            e(f"v_mov_b32 {v(r)}, {v(expr_reg)}")
            e(f"v_add_u32 {v(r+1)}, 0x10000, {v(expr_reg)}")
            e(f"v_add_u32 {v(r+2)}, 0x20000, {v(expr_reg)}")
            return [r, r+1, r+2]
        vTr_r = V.alloc(1); vTr_cp = V.alloc(1); vTr_nh = V.alloc(1); vTr_kh = V.alloc(1)
        e(f"v_bfe_u32 {v(vTr_r)}, {v(vL)}, 2, 2")
        e(f"v_and_b32 {v(t4)}, 1, {v(vL)}"); e(f"v_lshlrev_b32 {v(t4)}, 4, {v(t4)}")
        e(f"v_bfe_u32 {v(t5)}, {v(vL)}, 1, 1"); e(f"v_lshl_add_u32 {v(vTr_cp)}, {v(t5)}, 3, {v(t4)}")
        e(f"v_bfe_u32 {v(vTr_nh)}, {v(vL)}, 4, 1")
        e(f"v_lshrrev_b32 {v(vTr_kh)}, 5, {v(vL)}")
        def wbase(dst, xor_nh_sgpr=None):
            e(f"v_xor_b32 {v(t4)}, s39, {v(vTr_r)}")
            e(f"v_lshlrev_b32 {v(t4)}, 6, {v(t4)}")
            e(f"v_lshl_add_u32 {v(t4)}, {v(vTr_r)}, 8, {v(t4)}")
            e(f"v_lshl_add_u32 {v(t4)}, {v(vTr_kh)}, 11, {v(t4)}")
            if xor_nh_sgpr:
                e(f"v_xor_b32 {v(t5)}, {xor_nh_sgpr}, {v(vTr_nh)}")
                e(f"v_lshl_add_u32 {v(t4)}, {v(t5)}, 5, {v(t4)}")
            else:
                e(f"v_lshl_add_u32 {v(t4)}, {v(vTr_nh)}, 5, {v(t4)}")
            e(f"v_add_u32 {v(dst)}, {v(t4)}, {v(vTr_cp)}")
        wbase(t6); aW = three('aW', t6)
        e(f"v_and_b32 {v(t4)}, 31, {v(vL)}")
        e(f"v_bfe_u32 {v(t5)}, {v(vL)}, 1, 3")
        e(f"v_xor_b32 {v(t5)}, {v(t5)}, {v(vTr_kh)}")
        e(f"v_lshlrev_b32 {v(t5)}, 4, {v(t5)}")
        e(f"v_lshl_add_u32 {v(t6)}, {v(t4)}, 7, {v(t5)}")
        aX = []
        for t in range(4):
            e(f"v_xor_b32 {v(t7)}, {32*t}, {v(t6)}")
            aX.append(three('aX', t7))
        self.stamp('start')

        S_BASE, O_BASE = 88, 216
        V.at(S_BASE, 160)
        acc = S_BASE
        NB = 3
        fA = [A.alloc(4, align=4) for _ in range(NB)]
        fB = [[A.alloc(4, align=4) for _ in range(2)] for _ in range(NB)]
        def gemm_phase(nm, wname, bname, bread, aWset, hook=None):
            def areads(g):
                s, t = g >> 2, g & 3
                ops = []
                for rd in range(2):
                    r, imm = self.ldsaddr(aWset, wname(s), (t >> 1) * 8192 + (4 * (t & 1) + rd) * 1024)
                    ops.append(f"ds_read_b64_tr_b16 {a(fA[g % NB] + 2*rd, 2)}, {v(r)} offset:{imm}")
                return ops
            def breads(g):
                s, t = g >> 2, g & 3
                ops = []
                for bt in range(2):
                    r, imm = bread(s)(t, bt)
                    ops.append(f"ds_read_b128 {a(fB[g % NB][bt], 4)}, {v(r)} offset:{imm}")
                return ops
            self.need(self.tags(wname(0), bname(0))); p.wait_lg(0); e("s_barrier")
            self.stamp(nm + '_first')
            for g in range(2): p.many(areads(g)); p.many(breads(g))
            for g in range(64):
                s, t = g >> 2, g & 3
                if t == 2:
                    if s < 15: self.need(self.tags(wname(s+1), bname(s+1)))
                    e("s_barrier")
                    if nm in (o.get('stage_stamps') or []): self.stamp(f"{nm}_s{s}")
                    if s > 0:
                        self.release(wname(s-1))
                        if (s-1) & 1: self.release(bname(s-1)[0])
                    if hook: hook(s)
                    self.queue(o['cap'] - len(self.pq) // 2)
                nxt = 4 if g + 1 < 64 else 0
                p.wait_lg(min(nxt, len(p.lg)))
                for bt in range(2):
                    c = "0" if g == 0 else v(acc + 16*bt, 16)
                    e(f"v_mfma_f32_32x32x16_bf16 {v(acc + 16*bt, 16)}, {a(fA[g % NB], 4)}, {a(fB[g % NB][bt], 4)}, {c}")
                    if g + 2 < 64: p.many(areads(g + 2) if bt == 0 else breads(g + 2))
                    self.piece()
                    if g >= self.extra_from:
                        for _ in range(2):
                            if self.extra: e(self.extra.pop(0))
            e("s_barrier")
            self.release(wname(15)); self.release(bname(15)[0])
        self.queue(o['cap'])
        def xread(s):
            def f(t, bt):
                return self.ldsaddr(aX[t], f"XX{s>>1}", (s & 1) * 8192 + bt * 4096)
            return f
        self.vTag = V.alloc(1); self.vPoll = V.alloc(1)
        vF = V.alloc(1); vPa = V.alloc(1); vLin2 = V.alloc(1); aQ = V.alloc(1)
        aK = [[V.alloc(1) for _ in range(3)] for _ in range(8)]
        aV = [[V.alloc(1) for _ in range(3)] for _ in range(4)]
        QQ = QQ_DG * DG
        extra = []
        x = extra.append
        x(f"v_readfirstlane_b32 s52, {v(vE)}")
        x("s_mul_i32 s52, s52, 0x9E3779B1"); x("s_add_u32 s52, s52, 0x7F4A7C15")
        x(f"v_mov_b32 {v(self.vTag)}, s52")
        x(f"v_add_u32 {v(vLin2)}, 0x20000, {v(vLin)}")
        x(f"s_lshl_b32 s56, s2, 7"); x(f"s_add_u32 s56, s56, {WS_QF}")
        x(f"v_mov_b32 {v(vF)}, s56")
        x(f"s_xor_b32 s56, s2, 8"); x("s_lshl_b32 s56, s56, 7"); x(f"s_add_u32 s56, s56, {WS_QF}")
        x(f"v_mov_b32 {v(vPa)}, s56")
        x(f"v_and_b32 {v(t4)}, 31, {v(vL)}")
        x(f"v_and_b32 {v(t5)}, 15, {v(vL)}")
        x(f"v_xor_b32 {v(t5)}, {v(t5)}, {v(vTr_kh)}")
        x(f"v_lshlrev_b32 {v(t5)}, 4, {v(t5)}")
        x(f"v_lshl_add_u32 {v(t6)}, {v(t4)}, 8, {v(t5)}")
        x("s_lshl_b32 s56, s43, 13")
        x(f"v_add_u32 {v(t6)}, s56, {v(t6)}")
        for t in range(8):
            x(f"v_xor_b32 {v(aK[t][0])}, {32*t}, {v(t6)}")
            x(f"v_add_u32 {v(aK[t][1])}, 0x10000, {v(aK[t][0])}")
            x(f"v_add_u32 {v(aK[t][2])}, 0x20000, {v(aK[t][0])}")
        for ai in range(4):
            x("s_lshl_b32 s56, s43, 1"); x(f"s_xor_b32 s56, s56, {ai}")
            x(f"v_xor_b32 {v(t4)}, s56, {v(vTr_r)}")
            x(f"v_lshlrev_b32 {v(t4)}, 6, {v(t4)}")
            x(f"v_lshl_add_u32 {v(t4)}, {v(vTr_r)}, 8, {v(t4)}")
            x(f"v_lshl_add_u32 {v(t4)}, {v(vTr_kh)}, 10, {v(t4)}")
            x(f"v_lshl_add_u32 {v(t4)}, {v(vTr_nh)}, 5, {v(t4)}")
            x(f"v_add_u32 {v(t4)}, {v(t4)}, {v(vTr_cp)}")
            x("s_lshl_b32 s56, s43, 13")
            x(f"v_add_u32 {v(aV[ai][0])}, s56, {v(t4)}")
            x(f"v_add_u32 {v(aV[ai][1])}, 0x10000, {v(aV[ai][0])}")
            x(f"v_add_u32 {v(aV[ai][2])}, 0x20000, {v(aV[ai][0])}")
        x("s_lshl_b32 s56, s42, 13"); x(f"s_add_u32 s56, s56, 0x20000")
        x(f"v_add_u32 {v(aQ)}, s56, {v(vL16)}")
        x(f"s_lshl_b32 s61, s2, 13"); x(f"s_add_u32 s61, s61, {WS_QD}")
        self.extra = extra; self.extra_from = 16
        if o.get('p1_repeat'):
            nP1 = sum(1 for gd in self.stream if gd['kind'] in ('X', 'W'))
            first = [dict(gd) for gd in self.stream[:nP1]]
            rest = self.stream[nP1:]
            self.stream = self.stream[:nP1]
            sv = self.extra; self.extra = []
            gemm_phase('p0', lambda s: f"W{s}", lambda s: (f"XX{s>>1}", s & 1), xread, aW)
            self.extra = sv
            for c in list(self.chunks): del self.chunks[c]
            self.stream = first + rest; self.si = 0
            self.issue(o['pro']); self.queue(o['cap'])
        gemm_phase('p1', lambda s: f"W{s}", lambda s: (f"XX{s>>1}", s & 1), xread, aW)
        assert not self.extra
        self.stamp('p1_end')
        for r in aW: V.release(r)
        for s_ in aX:
            for r in s_: V.release(r)
        V.release(self.vX, 2); V.release(self.vW, 2); V.release(vE)
        self.phase = 2

        q = S_BASE + 32
        assert self.dg9_free; self.dg9_free = False
        for k in range(8, 16):
            e(f"v_cvt_pk_bf16_f32 {v(q+k)}, {v(acc+2*k)}, {v(acc+2*k+1)}")
        for i2 in range(2):
            e(f"buffer_store_dwordx4 {v(q+8+4*i2, 4)}, {v(vLin)}, s[32:35], s61 offen offset:{i2*1024} sc1", 'qst')
        for k in range(8):
            e(f"v_cvt_pk_bf16_f32 {v(q+k)}, {v(acc+2*k)}, {v(acc+2*k+1)}")
        for i2 in range(2):
            e(f"ds_write_b128 {v(vLin2)}, {v(q+4*i2, 4)} offset:{QQ - 0x20000 + i2*1024}")
        self.gates.discard('kq')
        self.stamp('q_stored')
        self.issue(o['n1'])
        self.stamp('q_n1')
        p.wait_tags({'qst'})
        self.stamp('q_acked')
        self.wg_flag(vF)
        self.issue(o['n2'])
        self.stamp('q_flag')
        self.poll(vPa)
        self.stamp('q_polled')
        self.flush_pieces()
        e(f"s_add_u32 m0, s44, {QQ + 8192}")
        e(f"s_xor_b32 s56, s2, 8"); e("s_lshl_b32 s56, s56, 13"); e(f"s_add_u32 s56, s56, {WS_QD}")
        for i2 in range(2):
            e(f"buffer_load_dwordx4 {v(vLin)}, s[32:35], s56 offen offset:{i2*1024} sc1 lds", 'qp')
        self.issue(o['n2b'])
        p.wait_tags({'qp'} | self.tags('K0')); p.wait_lg(0); e("s_barrier")
        self.gates.discard('v')
        V.release(vLin2)
        for r in fA: A.release(r, 4)
        for x_ in fB:
            for r in x_: A.release(r, 4)
        fQ = A.alloc(32, align=4)
        for T_ in range(8):
            e(f"ds_read_b128 {a(fQ+4*T_, 4)}, {v(aQ)} offset:{QQ - 0x20000 + T_*1024}")
        self.stamp('q_ready')

        S = S_BASE
        fK = A.alloc(32, align=4)
        vM = V.alloc(1)
        DK = 4
        def kread(n):
            s, t = n >> 3, n & 7
            r, imm = self.ldsaddr(aK[t], f"K{s}", 0)
            return f"ds_read_b128 {a(fK + 4*(n & 7), 4)}, {v(r)} offset:{imm}"
        for n in range(DK): e(kread(n))
        def maxops(s, first):
            ops = []
            for k in range(8):
                x, y = S + 16*s + 2*k, S + 16*s + 2*k + 1
                if first and k == 0: ops.append(f"v_max_f32 {v(vM)}, {v(x)}, {v(y)}")
                else: ops.append(f"v_max3_f32 {v(vM)}, {v(vM)}, {v(x)}, {v(y)}")
            return ops
        fV = A.alloc(32, align=4)
        DV = 4
        def vread(n):
            s, f = n >> 3, n & 7
            u, ai = f >> 2, f & 3
            ops = []
            for rd in range(2):
                r, imm = self.ldsaddr(aV[ai], f"V{s}", (4*u + 2*rd) * 1024)
                ops.append(f"ds_read_b64_tr_b16 {a(fV + 4*f + 2*rd, 2)}, {v(r)} offset:{imm}")
            return ops
        aRw = V.alloc(1); aRr = V.alloc(1); aSw = V.alloc(1); aSr = V.alloc(1)
        vF2 = V.alloc(1); vPo = V.alloc(1); vPall = V.alloc(1); vF3 = V.alloc(1); vP3 = V.alloc(1); vOut = V.alloc(1)
        aWO = [V.alloc(1) for _ in range(3)]; aL = [V.alloc(1) for _ in range(3)]
        late = []
        extra = []; x = extra.append
        x(f"v_lshlrev_b32 {v(t0)}, 2, {v(vL)}")
        x("s_lshl_b32 s58, s39, 9"); x(f"s_add_u32 s59, s58, {QQ}")
        x(f"v_add_u32 {v(aSw)}, s59, {v(t0)}")
        x("s_xor_b32 s58, s58, 512"); x(f"s_add_u32 s59, s58, {QQ}")
        x(f"v_add_u32 {v(aSr)}, s59, {v(t0)}")
        x("s_xor_b32 s56, s37, s42"); x("s_lshl_b32 s56, s56, 1"); x("s_add_u32 s56, s56, s43")
        x("s_lshl_b32 s56, s56, 13"); x("s_lshl_b32 s58, s41, 10"); x("s_add_u32 s56, s56, s58")
        x("s_add_u32 s62, s56, 1024"); x("s_add_u32 s63, s62, 4096")
        x(f"s_lshl_b32 s56, s2, 7"); x(f"s_add_u32 s56, s56, {WS_OF}")
        x(f"v_mov_b32 {v(vF2)}, s56")
        x(f"s_and_b32 s58, s2, 0xf7"); x("s_lshl_b32 s58, s58, 7"); x(f"s_add_u32 s58, s58, {WS_OF}")
        x(f"v_and_b32 {v(t0)}, 1, {v(vL)}"); x(f"v_lshl_add_u32 {v(vPo)}, {v(t0)}, 10, s58")
        x(f"s_and_b32 s58, s2, 0xc7"); x("s_lshl_b32 s58, s58, 7"); x(f"s_add_u32 s58, s58, {WS_OF}")
        x(f"v_and_b32 {v(t0)}, 7, {v(vL)}"); x(f"v_lshl_add_u32 {v(vPall)}, {v(t0)}, 10, s58")
        x("s_and_b32 s56, s36, 1")
        x(f"v_xor_b32 {v(t4)}, s39, {v(vTr_r)}")
        x(f"v_lshlrev_b32 {v(t4)}, 6, {v(t4)}")
        x(f"v_lshl_add_u32 {v(t4)}, {v(vTr_r)}, 8, {v(t4)}")
        x(f"v_lshl_add_u32 {v(t4)}, {v(vTr_kh)}, 11, {v(t4)}")
        x(f"v_xor_b32 {v(t5)}, s56, {v(vTr_nh)}")
        x(f"v_lshl_add_u32 {v(t4)}, {v(t5)}, 5, {v(t4)}")
        x(f"v_add_u32 {v(aWO[0])}, {v(t4)}, {v(vTr_cp)}")
        x(f"v_add_u32 {v(aWO[1])}, 0x10000, {v(aWO[0])}"); x(f"v_add_u32 {v(aWO[2])}, 0x20000, {v(aWO[0])}")
        x(f"v_mov_b32 {v(aL[0])}, {v(vL16)}"); x(f"v_add_u32 {v(aL[1])}, 0x10000, {v(vL16)}"); x(f"v_add_u32 {v(aL[2])}, 0x20000, {v(vL16)}")
        x(f"s_lshl_b32 s56, s2, 7"); x(f"s_add_u32 s56, s56, {WS_PF}")
        x(f"v_mov_b32 {v(vF3)}, s56")
        x(f"v_and_b32 {v(t0)}, 3, {v(vL)}")
        x(f"v_max_u32 {v(t0)}, 1, {v(t0)}")
        x(f"v_xor_b32 {v(t0)}, s2, {v(t0)}")
        x(f"v_lshlrev_b32 {v(t0)}, 7, {v(t0)}")
        x(f"v_add_u32 {v(vP3)}, {WS_PF}, {v(t0)}")
        x("s_lshr_b32 s56, s36, 1"); x("s_lshl_b32 s56, s56, 5"); x("s_lshl_b32 s58, s38, 6"); x("s_add_u32 s56, s56, s58")
        x(f"v_and_b32 {v(t2)}, 31, {v(vL)}"); x(f"v_add_u32 {v(t2)}, s56, {v(t2)}"); x(f"v_lshlrev_b32 {v(t2)}, 11, {v(t2)}")
        x("s_lshl_b32 s56, s53, 7"); x("s_lshl_b32 s58, s39, 5"); x("s_add_u32 s56, s56, s58")
        x("s_and_b32 s58, s36, 1"); x("s_lshl_b32 s58, s58, 4"); x("s_add_u32 s56, s56, s58"); x("s_lshl_b32 s56, s56, 1")
        x(f"v_lshl_add_u32 {v(t2)}, {v(vTr_kh)}, 4, {v(t2)}")
        x(f"v_add_u32 {v(vOut)}, s56, {v(t2)}")
        self.extra = extra
        self.queue(o['cap2'])
        for s in range(8):
            mx = maxops(s-1, s == 1) if s > 0 else []
            for t in range(8):
                n = 8*s + t
                if t == 8 - DK:
                    if s < 7: self.need(self.tags(f"K{s+1}"))
                    else: self.need(self.tags("V0"))
                    e("s_barrier")
                    if s > 0: self.release(f"K{s-1}")
                    self.queue(o['cap2'] - len(self.pq) // 2)
                if t % 2 == 0 and n + 1 < 64 - DK + 2 and len(p.lg) > DK - 2: p.wait_lg(DK - 2)
                c = "0" if t == 0 else v(S + 16*s, 16)
                e(f"v_mfma_f32_32x32x16_bf16 {v(S + 16*s, 16)}, {a(fK + 4*t, 4)}, {a(fQ + 4*t, 4)}, {c}")
                if n + DK < 64: e(kread(n + DK))
                elif s == 7:
                    p.many(vread(n + DK - 64))
                if t >= 2 and mx:
                    e(mx.pop(0))
                    if t >= 6 and mx: e(mx.pop(0))
                self.piece()
                for _ in range(2 if t < 2 or not mx else 1):
                    if self.extra: e(self.extra.pop(0))
            assert not mx
        while self.extra: e(self.extra.pop(0))
        self.stamp('qk_end')
        rs = [self.chunks['V0'], self.chunks['V1']]
        assert QQ_DG not in rs
        e("s_cmp_eq_u32 s42, 0")
        e(f"s_mov_b32 s58, {rs[1]*DG}")
        e(f"s_cselect_b32 s56, {rs[0]*DG}, s58")
        e("s_lshl_b32 s58, s43, 13"); e("s_add_u32 s59, s56, s58")
        e(f"v_add_u32 {v(aRw)}, s59, {v(vL16)}")
        e("s_xor_b32 s58, s58, 8192"); e("s_add_u32 s59, s56, s58")
        e(f"v_add_u32 {v(aRr)}, s59, {v(vL16)}")
        for s_ in aK:
            for r in s_: V.release(r)
        p.many(maxops(7, False))
        vM2 = V.alloc(1); vNM = V.alloc(1)
        e(f"v_mov_b32 {v(vM2)}, {v(vM)}")
        e(f"v_permlane32_swap_b32 {v(vM)}, {v(vM2)}")
        e(f"v_max_f32 {v(vM)}, {v(vM)}, {v(vM2)}")
        C = 128 ** -0.5 * math.log2(math.e)
        import struct
        cbits = struct.unpack('<I', struct.pack('<f', C))[0]
        e(f"s_mov_b32 s61, {cbits:#x}")
        e(f"v_mul_f32 {v(vM)}, s61, {v(vM)}")
        e(f"v_sub_f32 {v(vNM)}, 0, {v(vM)}")
        def smops(s):
            b = S + 16*s
            ops = []
            for u in range(2):
                for k in range(8): ops.append(f"v_fma_f32 {v(b+8*u+k)}, {v(b+8*u+k)}, s61, {v(vNM)}")
                for k in range(8): ops.append(f"v_exp_f32 {v(b+8*u+k)}, {v(b+8*u+k)}")
                for k in range(4): ops.append(f"v_cvt_pk_bf16_f32 {v(b+4*u+k)}, {v(b+8*u+2*k)}, {v(b+8*u+2*k+1)}")
            return ops
        p.many(smops(0))
        oOwn = O_BASE
        oSnd = A.alloc(32, align=4)
        lAcc = A.alloc(16, align=4)
        ones = A.alloc(4, align=4)
        e(f"v_mov_b32 {v(t0)}, 0x3f803f80")
        for k in range(4): e(f"v_accvgpr_write_b32 {a(ones+k)}, {v(t0)}")
        def oacc(ai): return v(oOwn + 16*ai, 16) if ai < 2 else a(oSnd + 16*(ai-2), 16)
        self.rs = None
        for s in range(8):
            sm = smops(s+1) if s < 7 else []
            if s == 0: self.gates.discard('wo')
            nslot = 10; slot = 0
            for f in range(8):
                n = 8*s + f
                u, ai = f >> 2, f & 3
                if f == 8 - DV:
                    if s < 7: self.need(self.tags(f"V{s+1}"))
                    e("s_barrier")
                    if s > 2: self.release(f"V{s-1}")
                    elif s == 0: self.release("K7")
                    self.queue(o['wo_pv'] - len(self.pq) // 2)
                P_ = v(S + 16*s + 4*u, 4)
                c = "0" if (s == 0 and u == 0) else oacc(ai)
                if f % 2 == 0 and len(p.lg) > 2*(DV - 2): p.wait_lg(2*(DV - 2))
                e(f"v_mfma_f32_32x32x16_bf16 {oacc(ai)}, {a(fV + 4*f, 4)}, {P_}, {c}")
                if n + DV < 64: p.many(vread(n + DV))
                k = (len(sm) + (nslot - slot) - 1) // (nslot - slot)
                for _ in range(min(k, len(sm))): e(sm.pop(0))
                slot += 1
                if ai == 3:
                    c = "0" if (s == 0 and u == 0) else a(lAcc, 16)
                    e(f"v_mfma_f32_32x32x16_bf16 {a(lAcc, 16)}, {a(ones, 4)}, {P_}, {c}")
                    k = (len(sm) + (nslot - slot) - 1) // (nslot - slot)
                    for _ in range(min(k, len(sm))): e(sm.pop(0))
                    slot += 1
                self.piece()
            assert not sm
        self.flush_pieces()
        self.stamp('pv_end')
        vLo = V.alloc(1)
        e(f"ds_write_b32 {v(aSw)}, {v(vM)}")
        for k in range(8):
            e(f"ds_write_b128 {v(aRw)}, {a(oSnd + 4*k, 4)} offset:{k*1024}")
        e(f"ds_write_b32 {v(aSw)}, {a(lAcc)} offset:256")
        e(f"v_accvgpr_read_b32 {v(vLo)}, {a(lAcc)}")
        p.wait_lg(0); e("s_barrier")
        self.release("V7")
        self.stamp('rs_bar')
        vMp = V.alloc(1); vLp = V.alloc(1)
        e(f"ds_read_b32 {v(vMp)}, {v(aSr)}")
        e(f"ds_read_b32 {v(vLp)}, {v(aSr)} offset:256")
        oP = S
        for k in range(8):
            e(f"ds_read_b128 {v(oP + 4*k, 4)}, {v(aRr)} offset:{k*1024}")
        vMx = V.alloc(1); vF0 = V.alloc(2, align=2); vF1 = V.alloc(2, align=2)
        e(f"v_max_f32 {v(vMx)}, {v(vM)}, {v(vMp)}")
        e(f"v_sub_f32 {v(vF0)}, {v(vM)}, {v(vMx)}")
        e(f"v_sub_f32 {v(vF1)}, {v(vMp)}, {v(vMx)}")
        e(f"v_exp_f32 {v(vF0)}, {v(vF0)}")
        e(f"v_exp_f32 {v(vF1)}, {v(vF1)}")
        e(f"v_mul_f32 {v(vLo)}, {v(vLo)}, {v(vF0)}")
        e(f"v_fma_f32 {v(vLo)}, {v(vLp)}, {v(vF1)}, {v(vLo)}")
        e(f"v_rcp_f32 {v(vLo)}, {v(vLo)}")
        e(f"v_mul_f32 {v(vF0)}, {v(vF0)}, {v(vLo)}")
        e(f"v_mul_f32 {v(vF1)}, {v(vF1)}, {v(vLo)}")
        e(f"v_mov_b32 {v(vF0+1)}, {v(vF0)}")
        e(f"v_mov_b32 {v(vF1+1)}, {v(vF1)}")
        ob = S + 32
        for T_ in range(4):
            for k in range(8*T_, 8*T_ + 8, 2): e(f"v_pk_mul_f32 {v(oOwn+k, 2)}, {v(oOwn+k, 2)}, {v(vF0, 2)}")
            for k in range(8*T_, 8*T_ + 8, 2): e(f"v_pk_fma_f32 {v(oOwn+k, 2)}, {v(oP+k, 2)}, {v(vF1, 2)}, {v(oOwn+k, 2)}")
            for k in range(4*T_, 4*T_ + 4): e(f"v_cvt_pk_bf16_f32 {v(ob+k)}, {v(oOwn+2*k)}, {v(oOwn+2*k+1)}")
            so = 's62' if T_ < 2 else 's63'
            e(f"buffer_store_dwordx4 {v(ob+4*T_, 4)}, {v(vL16)}, s[80:83], {so} offen offset:{(T_&1)*2048} sc1", 'ost')
        self.stamp('o_stored')
        self.hold = 0
        self.issue(o['n3'])
        p.wait_tags({'ost'}); p.wait_lg(0)
        self.stamp('o_acked')
        self.wg_flag(vF2)
        self.free += rs; self.dg9_free = True; self.phase = 3
        self.hold = 2
        self.issue(o['n4'])
        for s_ in aV:
            for r in s_: V.release(r)
        A.release(oSnd, 32); A.release(lAcc, 16); A.release(ones, 4)
        A.release(fQ, 32); A.release(fK, 32); A.release(fV, 32)
        self.stamp('o_flag')
        self.poll(vPo)
        self.stamp('o_polled')
        self.hold = 0
        self.gates.discard('opair')
        k0 = self.si
        oo = [gd for gd in self.stream[k0:] if gd['chunk'] in ('OO0', 'OO1')]
        rest = [gd for gd in self.stream[k0:] if gd['chunk'] not in ('OO0', 'OO1')]
        self.stream = self.stream[:k0] + oo + rest
        self.issue(4)
        vAll = V.alloc(1)
        e(f"buffer_load_dword {v(vAll)}, {v(vPall)}, s[32:35], 0 offen sc1")

        acc = S_BASE
        fA[:] = [A.alloc(4, align=4) for _ in range(NB)]
        fB[:] = [[A.alloc(4, align=4) for _ in range(2)] for _ in range(NB)]
        self.extra = []
        def oread(s):
            def f(t, bt):
                return self.ldsaddr(aL, f"OO{s>>1}", (s & 1) * 8192 + (2*t + bt) * 1024)
            return f
        def hook(s):
            if s == o['oall_at']:
                D = self.lab("alldone")
                e(f"v_cmp_ne_u32 vcc, s52, {v(vAll)}")
                p.raw(f"s_cbranch_vccz {D}")
                save = list(p.vm)
                self.poll(vPall)
                p.vm = save
                p.label(D)
                self.gates.discard('oall')
        gemm_phase('p3', lambda s: f"WO{s}", lambda s: (f"OO{s>>1}", s & 1), oread, aWO, hook)
        self.stamp('p3_end')
        pb = S_BASE + 32
        for ps in range(1, 4):
            for k in range(4): e(f"v_cvt_pk_bf16_f32 {v(pb + 4*ps + k)}, {v(acc + 8*ps + 2*k)}, {v(acc + 8*ps + 2*k + 1)}")
            e(f"s_xor_b32 s56, s2, {ps}"); e("s_lshl_b32 s56, s56, 15"); e(f"s_add_u32 s56, s56, {WS_PD + (ps-1)*8192}")
            e(f"buffer_store_dwordx4 {v(pb + 4*ps, 4)}, {v(vLin)}, s[32:35], s56 offen sc1", 'pst')
        self.stamp('p_stored')
        p.wait_tags({'pst'})
        self.wg_flag(vF3)
        self.stamp('p_flag')
        self.poll(vP3)
        self.stamp('p_polled')
        pr = S_BASE + 64
        for ps in range(1, 4):
            e(f"s_lshl_b32 s56, s2, 15"); e(f"s_add_u32 s56, s56, {WS_PD + (ps-1)*8192}")
            e(f"buffer_load_dwordx4 {v(pr + 4*(ps-1), 4)}, {v(vLin)}, s[32:35], s56 offen sc1")
        up = S_BASE + 80
        for ps in range(3):
            for k in range(4):
                e(f"v_lshlrev_b32 {v(up)}, 16, {v(pr + 4*ps + k)}")
                e(f"v_and_b32 {v(up+1)}, 0xffff0000, {v(pr + 4*ps + k)}")
                e(f"v_add_f32 {v(acc+2*k)}, {v(acc+2*k)}, {v(up)}")
                e(f"v_add_f32 {v(acc+2*k+1)}, {v(acc+2*k+1)}, {v(up+1)}")
        for k in range(4): e(f"v_cvt_pk_bf16_f32 {v(pb+k)}, {v(acc+2*k)}, {v(acc+2*k+1)}")
        e(f"buffer_store_dwordx4 {v(pb, 4)}, {v(vOut)}, s[28:31], 0 offen")
        e("s_and_b32 s56, s2, 0x3b")
        e("s_or_b32 s56, s56, s39")
        p.raw("s_cmp_lg_u32 s56, 0")
        p.raw("s_cbranch_scc1 L_fin")
        e(f"s_lshl_b32 s56, s38, 8")
        e(f"v_mov_b32 {v(t0)}, s56")
        self.flag_store(t0)
        p.label("L_fin")
        self.stamp('end')
        if o['stamps']:
            e(f"s_lshl_b32 s56, s2, 2"); e("s_add_u32 s56, s56, s39"); e("s_lshl_b32 s56, s56, 8"); e(f"s_add_u32 s56, s56, {WS_DBG}")
            e(f"v_lshlrev_b32 {v(t0)}, 2, {v(vL)}"); e(f"v_add_u32 {v(t0)}, s56, {v(t0)}")
            e(f"buffer_store_dword v255, {v(t0)}, s[32:35], 0 offen")
            e(f"v_add_u32 {v(t0)}, 0x40000, {v(t0)}")
            e(f"buffer_store_dword v254, {v(t0)}, s[32:35], 0 offen")
        p.raw("s_waitcnt vmcnt(0)")
        if o['probe']:
            p.raw("s_sub_u32 s86, s88, s86")
            p.raw(f"s_mul_i32 s86, s86, {o['probe'][2]}")
            p.raw("s_memrealtime s[88:89]"); p.raw("s_waitcnt lgkmcnt(0)")
            p.raw("s_add_u32 s86, s86, s88")
            p.label("L_probe")
            p.raw("s_memrealtime s[88:89]"); p.raw("s_waitcnt lgkmcnt(0)")
            p.raw("s_sub_u32 s90, s88, s86")
            p.raw("s_cmp_lt_i32 s90, 0")
            p.raw("s_cbranch_scc1 L_probe")
        p.label("L_exit")
        p.raw("s_endpgm")
        assert self.si == len(self.stream), (self.si, len(self.stream))
        p.finalize()
        return self.text()

    def text(self):
        nv = 256; na = self.A.hi
        na = max(na, 4)
        total = nv + ((na + 7) // 8) * 8
        hdr = f"""; GQA block (Q projection, cached attention, output projection) as one persistent launch.
; @launch grid=(256,1,1) block=(256,1,1) lds=163840
.amdgcn_target "amdgcn-amd-amdhsa--gfx950"
.text
.globl {NAME}
.p2align 8
.type {NAME},@function
{NAME}:
"""
        ftr = f"""
.section .rodata,"a"
.p2align 6
.amdhsa_kernel {NAME}
  .amdhsa_next_free_vgpr 512
  .amdhsa_next_free_sgpr 96
  .amdhsa_accum_offset 256
  .amdhsa_group_segment_fixed_size 0
  .amdhsa_kernarg_size 64
  .amdhsa_user_sgpr_count 2
  .amdhsa_user_sgpr_kernarg_segment_ptr 1
  .amdhsa_system_sgpr_workgroup_id_x 1
.end_amdhsa_kernel
"""
        return hdr + self.p.text() + ftr

if __name__ == "__main__":
    import json
    out = sys.argv[1] if len(sys.argv) > 1 else "standalone__gqa_block_cached__near_ridge.s"
    kw = json.loads(sys.argv[2]) if len(sys.argv) > 2 else {}
    g = Gen(**kw)
    txt = g.build()
    open(out, "w").write(txt)
    if g.o['stamps']: json.dump(g.stamp_names, open(out[:-2] + ".stamps.json", "w"))
    print("written", out, "instr counts", g.p.count(), "nops", g.p.stats, "V hi", g.V.hi, "A hi", g.A.hi, "stamps", g.stamp_names)
```
